```python
import torch

def _softmax(x, axis=-1):
    return torch.softmax(x, dim=axis)

def _gelu(x):
    return torch.nn.functional.gelu(x, approximate='tanh')

def _silu(x):
    return torch.nn.functional.silu(x)

def _sigmoid(x):
    return torch.sigmoid(x)

def _layernorm(x, axis=-1, eps=1e-05):
    m = x.mean(dim=axis, keepdim=True)
    v = x.var(dim=axis, keepdim=True, unbiased=False)
    return (x - m) / torch.sqrt(v + eps)

def _scatter_add(tgt, idx, src, axis=0):
    return tgt.clone().index_add_(axis, idx, src)

def _segment_sum(src, seg, n):
    out = torch.zeros((n,) + src.shape[1:], dtype=src.dtype)
    return out.index_add_(0, seg, src)

def _pad(x, pw):
    flat = tuple((v for pair in reversed(pw) for v in pair))
    return torch.nn.functional.pad(x, flat)
kernel_name = 'adaLN_cond__gqa_block_cached__swiglu_ffn__prompt'

def setup_inputs():

    _w = lambda a: (lambda t: t.to(torch.bfloat16) if t.is_floating_point() else t)(torch.as_tensor(a))

    def _A_setup():
        B, Sq, D = (1, 2048, 576)
        Hq, Hkv, Sk, Dh = (32, 16, 2048, 128)
        assert Hq % Hkv == 0, (Hq, Hkv)
        return {'x': _w((lambda *s: torch.randn(*s, dtype=torch.bfloat16) * 0.05)(B, Sq, D)), 'k_cache': _w((lambda *s: torch.randn(*s, dtype=torch.bfloat16) * 3.2)(B, Hkv, Sk, Dh)), 'v_cache': _w((lambda *s: torch.randn(*s, dtype=torch.bfloat16) * 0.4)(B, Hkv, Sk, Dh)), 'wq': _w((lambda *s: torch.randn(*s, dtype=torch.bfloat16) * 3.2)(D, Hq * Dh) * D ** (-0.5)), 'wo': _w((lambda *s: torch.randn(*s, dtype=torch.bfloat16) * 0.4)(Hq * Dh, D) * (Hq * Dh) ** (-0.5))}
    _A_in = _A_setup()

    def _B_setup():
        B, S, D, F = (1, 2048, 576, 4608)
        return {'x': _w((lambda *s: torch.randn(*s, dtype=torch.bfloat16) * 0.05)(B, S, D)), 'w_gate': _w((lambda *s: torch.randn(*s, dtype=torch.bfloat16) * 0.05)(D, F)), 'w_up': _w((lambda *s: torch.randn(*s, dtype=torch.bfloat16) * 0.05)(D, F)), 'w_down': _w((lambda *s: torch.randn(*s, dtype=torch.bfloat16) * 0.05)(F, D))}
    _B_in = _B_setup()
    return {'A_x': _A_in['x'], 'A_k_cache': _A_in['k_cache'], 'A_v_cache': _A_in['v_cache'], 'A_wq': _A_in['wq'], 'A_wo': _A_in['wo'], 'B_x': _B_in['x'], 'B_w_gate': _B_in['w_gate'], 'B_w_up': _B_in['w_up'], 'B_w_down': _B_in['w_down'], 'c': _w((lambda *s: torch.randn(*s, dtype=torch.bfloat16) * 0.1)(1, 576) * 8.0), 'w_mod': _w((lambda *s: torch.randn(*s, dtype=torch.bfloat16) * 0.1)(576, 6 * 576) * 576 ** (-0.5) * 8.0)}

def reference(A_x, A_k_cache, A_v_cache, A_wq, A_wo, B_x, B_w_gate, B_w_up, B_w_down, c, w_mod):

    def _A_ref(x, k_cache, v_cache, wq, wo):
        B, Sq, D = x.shape
        Hq, Dh = (32, 128)
        Hkv = k_cache.shape[1]
        rep = Hq // Hkv
        q = (lambda x, *d: x.permute(*d))((x @ wq).reshape(B, Sq, Hq, Dh), 0, 2, 1, 3)
        k = (lambda x, n, axis: torch.repeat_interleave(x, n, dim=axis))(k_cache, rep, axis=1)
        v = (lambda x, n, axis: torch.repeat_interleave(x, n, dim=axis))(v_cache, rep, axis=1)
        scores = torch.einsum('bhqd,bhkd->bhqk', q, k) * Dh ** (-0.5)
        p = _softmax(scores, axis=-1)
        o = torch.einsum('bhqk,bhkd->bhqd', p, v)
        return (lambda x, *d: x.permute(*d))(o, 0, 2, 1, 3).reshape(B, Sq, Hq * Dh) @ wo

    def _B_ref(x, w_gate, w_up, w_down):
        g = _silu(x @ w_gate)
        u = x @ w_up
        return g * u @ w_down
    x = A_x
    mod = (_silu(c) @ w_mod).reshape(c.shape[0], 6, 1, -1)
    sa, ca, ga, sb, cb, gb = (mod[:, 0].clone(), mod[:, 1].clone(), mod[:, 2].clone(), mod[:, 3].clone(), mod[:, 4].clone(), mod[:, 5].clone())
    h = _layernorm(x, axis=-1) * (1 + ca) + sa
    x = x + ga * _A_ref(h, A_k_cache, A_v_cache, A_wq, A_wo)
    h = _layernorm(x, axis=-1) * (1 + cb) + sb
    x = x + gb * _B_ref(h, B_w_gate, B_w_up, B_w_down)
    return x
```

```python
import re

def regs_of(tok):
    tok = tok.strip()
    neg = tok.lstrip('-')
    if neg.startswith('abs('):
        neg = neg[4:-1]
    m = re.fullmatch(r'([va])(\d+)', neg)
    if m:
        return [(m.group(1), int(m.group(2)))]
    m = re.fullmatch(r'([va])\[(\d+):(\d+)\]', neg)
    if m:
        return [(m.group(1), i) for i in range(int(m.group(2)), int(m.group(3)) + 1)]
    return []

TRANS = ('v_exp_f32', 'v_log_f32', 'v_rcp_f32', 'v_rsq_f32', 'v_sqrt_f32')

def parse(line):
    s = line.split(';')[0].strip()
    if not s or s.endswith(':') or s.startswith('.'):
        return None
    parts = s.split(None, 1)
    mn = parts[0]
    ops = [o.strip() for o in parts[1].split(',')] if len(parts) > 1 else []
    ops = [o.split()[0] if o and not o.startswith('s[') else o for o in ops]
    R = [regs_of(o) for o in ops]
    flat = lambda L: [r for x in L for r in x]
    if mn.startswith('v_mfma'):
        return ('mfma', R[0], flat(R[1:3]), mn, R[3])
    if mn.startswith('v_permlane'):
        return ('valu', flat(R[:2]), flat(R[:2]), mn, [])
    if mn.startswith('v_cmp') or mn.startswith('v_readfirstlane') or mn.startswith('v_readlane'):
        return ('valu', [], flat(R), mn, [])
    if mn.startswith('v_'):
        src = flat(R[1:])
        if mn.startswith('v_fmac') or 'dpp' in s or 'row_' in s:
            src = src + R[0]
        return ('valu', R[0], src, mn, [])
    if mn.startswith('ds_read'):
        return ('dsr', R[0], flat(R[1:]), mn, [])
    if mn.startswith('ds_'):
        return ('dsw', [], flat(R), mn, [])
    if mn.startswith('buffer_load'):
        if s.rstrip().endswith(' lds'):
            return ('vmem', [], flat(R), mn, [])
        return ('vld', R[0], flat(R[1:]), mn, [])
    if mn.startswith('buffer_store'):
        return ('vst', [], flat(R), mn, [])
    return ('other', [], [], mn, [])


class Emit:
    def __init__(self):
        self.out = []
        self.pend = []
        self.n = 0
        self.mf = {}
        self.mc = {}
        self.vw = {}
        self.st = {}
        self.sw = -99
        self.nops = 0

    def raw(self, s):
        self.out.append(s)

    def label(self, s):
        self.out.append(s + ':')

    def _nop(self, k):
        self.nops += k
        while k > 0:
            c = min(k, 16)
            self.out.append('  s_nop %d' % (c - 1))
            self.n += c
            k -= c

    def wait_lgkm(self, k=0):
        if len(self.pend) > k:
            self.pend = self.pend[len(self.pend) - k:] if k else []
        self.out.append('  s_waitcnt lgkmcnt(%d)' % k)
        self.n += 1

    def __call__(self, line):
        for l in line.strip().split('\n'):
            self.one(l.strip())

    def one(self, line):
        p = parse(line)
        if p is None:
            self.out.append(line)
            return
        kind, dst, src, mn, srcc = p
        S = line.split(';')[0]
        if mn == 's_waitcnt':
            m = re.search(r'lgkmcnt\((\d+)\)', line)
            if m:
                k = int(m.group(1))
                self.pend = self.pend[len(self.pend) - k:] if (k and len(self.pend) > k) else (self.pend if k else [])
        touched = set(dst) | set(src) | set(srcc)
        idx = -1
        for i, d in enumerate(self.pend):
            if d & touched:
                idx = i
        if idx >= 0:
            k = len(self.pend) - 1 - idx
            self.wait_lgkm(min(k, 15))
        need = 0
        for r in touched:
            if r in self.mf:
                i, d = self.mf[r]
                if kind == 'mfma' and r in srcc and r not in src and tuple(d) == tuple(srcc):
                    continue
                need = max(need, 12 - (self.n - i - 1))
        if kind == 'mfma':
            for r in set(src) | set(srcc):
                if r in self.vw:
                    need = max(need, 2 - (self.n - self.vw[r][0] - 1))
        if kind in ('valu',):
            for r in src:
                if r in self.vw:
                    i, tr = self.vw[r]
                    if tr and not mn.startswith(TRANS):
                        need = max(need, 1 - (self.n - i - 1))
                    if mn.startswith('v_permlane') or 'dpp' in S or 'row_' in S:
                        need = max(need, 2 - (self.n - i - 1))
                    if mn.startswith('v_readfirstlane') or mn.startswith('v_readlane'):
                        need = max(need, 1 - (self.n - i - 1))
            for r in dst:
                if r in self.mc:
                    need = max(need, 7 - (self.n - self.mc[r] - 1))
                if r in self.st:
                    need = max(need, 2 - (self.n - self.st[r] - 1))
            if mn.startswith('v_cndmask') or re.search(r'\bs\d+|vcc', S.split(None, 1)[1].split(',', 1)[-1]):
                need = max(need, 2 - (self.n - self.sw - 1))
        if kind in ('vmem', 'vld', 'vst'):
            need = max(need, 5 - (self.n - self.sw - 1))
        if mn.startswith('s_cbranch_vcc'):
            need = max(need, 1 - (self.n - self.sw - 1))
        if need > 0:
            self._nop(need)
        self.out.append('  ' + line)
        i = self.n
        m = re.fullmatch(r's_nop (\d+)', S.strip())
        self.n += (int(m.group(1)) + 1) if m else 1
        if kind == 'mfma':
            for r in dst:
                self.mf[r] = (i, dst)
                self.vw.pop(r, None)
            for r in srcc:
                self.mc[r] = i
        else:
            for r in dst:
                self.mf.pop(r, None)
        if kind == 'valu':
            for r in dst:
                self.vw[r] = (i, mn.startswith(TRANS))
            if mn.startswith('v_cmp') or mn.startswith('v_readfirstlane') or mn.startswith('v_readlane'):
                self.sw = i
        if kind in ('dsr', 'vld'):
            for r in dst:
                self.vw.pop(r, None)
        if kind == 'dsr':
            self.pend.append(set(dst))
        if kind == 'dsw':
            self.pend.append(set())
        if kind == 'vst':
            for r in src:
                self.st[r] = i

    def text(self):
        return '\n'.join(self.out) + '\n'
```

```python
from emit import Emit
from k_small import *
from k_gemm import gemm, wave_id, tr_lane_addr

SA, SB, NA, NB, KF, VF, PA, PB = 64, 80, 96, 112, 128, 160, 28, 36
LA, LB, MX, LAF = 44, 45, 46, 48
QA, QB = 192, 224
KA, VA = 10, 18
DK0, DK1, DV = 22, 23, 24
THR = 0x42700000
rng = lambda b, n: f'v[{b}:{b+n-1}]'
arng = lambda b, n: f'a[{b}:{b+n-1}]'
MF = 'v_mfma_f32_32x32x16_bf16'

def exp_half(S, P, L, half):
    b = S + 8 * half; p = P + 4 * half
    E = lambda i: f'v_exp_f32 v{b+i}, v{b+i}'
    A = lambda i: f'v_add_f32 v{L}, v{L}, v{b+i}'
    C = lambda i: f'v_cvt_pk_bf16_f32 v{p+i}, v{b+2*i}, v{b+2*i+1}'
    return [E(0), E(1), A(0), E(2), A(1), E(3), A(2), C(0), E(4), A(3), E(5), A(4), C(1), E(6), A(5), E(7), A(6), C(2), A(7), C(3)]

def max16(S, m):
    L = [f'v_max3_f32 v{m}, v{S}, v{S+1}, v{S+2}']
    for i in range(3, 15, 2):
        L.append(f'v_max3_f32 v{m}, v{m}, v{S+i}, v{S+i+1}')
    L.append(f'v_max_f32 v{m}, v{m}, v{S+15}')
    return L

def kslot(j): return (((j - 2) // 2) % 4) * 16384 + (j % 2) * 8192
def vslot(j): return (((j - 1) // 2) % 4) * 16384 + ((j - 1) % 2) * 8192
def kread(j, s): return f'ds_read_b128 {rng(KF+4*s, 4)}, v{KA+s} offset:{kslot(j)}'
def vread(j, f):
    u, t = f >> 2, f & 3
    return [f'ds_read_b64_tr_b16 {rng(VF+4*f+2*h, 2)}, v{VA+t} offset:{vslot(j) + (16*u+4*h)*256}' for h in range(2)]
def dma(kind, tau, stage):
    q = stage % 4
    if kind == 'K':
        s = 40 + tau
        return [f's_add_u32 m0, s24, {q*16384 + tau*8192}', f's_add_u32 s44, s{s}, 0',
                f'buffer_load_dwordx4 v{DK0}, s[28:31], s44 offen lds',
                f'buffer_load_dwordx4 v{DK1}, s[28:31], s44 offen offset:1024 lds', f's_add_u32 s{s}, s{s}, 16384']
    s = 42 + tau
    return [f's_add_u32 m0, s24, {65536 + q*16384 + tau*8192}', f's_add_u32 s45, s{s}, 0',
            f'buffer_load_dwordx4 v{DV}, s[32:35], s45 offen lds',
            f'buffer_load_dwordx4 v{DV}, s[32:35], s45 offen offset:1024 lds', f's_add_u32 s{s}, s{s}, 16384']

def group(e, mfmas, fill, fixed=None):
    n = len(mfmas); fixed = fixed or {}
    cost = lambda i: 8 if i.startswith('v_exp') else 4
    tot = sum(cost(i) for i in fill) + sum(cost(i) for v in fixed.values() for i in v)
    done = 0; fill = list(fill)
    for g, m in enumerate(mfmas):
        e(m)
        for i in fixed.get(g, []):
            e(i); done += cost(i)
        while fill and (done + cost(fill[0]) / 2 <= tot * (g + 1) / n or g == n - 1):
            i = fill.pop(0); e(i); done += cost(i)

def slow(X, lbl, first=False):
    S, N, L, O = (SA, NA, LA, 0) if X == 'A' else (SB, NB, LB, 64)
    e = Emit()
    e.label(lbl)
    e('s_nop 15')
    e(f'v_mov_b32 v2, v{MX}')
    e(f'v_mov_b32 v3, v{MX}')
    e('v_permlane32_swap_b32 v2, v3')
    e('v_max_f32 v2, v2, v3')
    e('v_max_f32 v2, 0, v2')
    e('v_sub_f32 v3, 0, v2')
    e('v_exp_f32 v3, v3')
    for i in range(16):
        e(f'v_sub_f32 v{S+i}, v{S+i}, v2')
        e(f'v_sub_f32 v{N+i}, v{N+i}, v2')
    e(f'v_mul_f32 v{L}, v{L}, v3')
    for i in range(0, 64, 4):
        for k in range(4): e(f'v_accvgpr_read_b32 v{4+k}, a{O+i+k}')
        for k in range(4): e(f'v_mul_f32 v{4+k}, v{4+k}, v3')
        for k in range(4): e(f'v_accvgpr_write_b32 a{O+i+k}, v{4+k}')
    e('s_nop 3')
    e(f's_branch {lbl}_back')
    return e.text()

def k_attn():
    e = Emit(); name = 'k2_attn_kernel'
    head(e, name, 256)
    srd(e, 4, A_WQ, 576 * 8192)
    srd(e, 8, A_WS, FR, H1)
    srd(e, 12, A_WS, 64 * 256 * 1024, OF)
    srd(e, 28, A_K, 16 * 524288)
    srd(e, 32, A_V, 16 * 524288)
    wave_id(e, 16)
    e(f'''s_and_b32 s17, s2, 7
    s_lshl_b32 s17, s17, 1
    s_bfe_u32 s18, s2, 0x10003
    s_add_u32 s17, s17, s18
    s_lshr_b32 s18, s2, 4
    s_lshl_b32 s20, s18, 2
    s_add_u32 s20, s20, s16
    s_mul_i32 s21, s20, 36864
    s_lshl_b32 s22, s17, 9
    s_lshl_b32 s24, s16, 13
    v_lshlrev_b32 v1, 4, v0''')
    for j in range(8):
        e(f'''s_lshl_b32 s26, s16, 4
        s_add_u32 s26, s26, {2*j}
        v_lshrrev_b32 v2, 5, v0
        v_add_u32 v2, s26, v2
        v_and_b32 v3, 3, v2
        v_lshlrev_b32 v3, 2, v3
        v_and_b32 v4, 31, v0
        v_xor_b32 v3, v3, v4
        v_lshlrev_b32 v2, 13, v2
        v_lshl_add_u32 v{10+j}, v3, 4, v2''')
    tr_lane_addr(e, 9, 512, 32, 2, 3)
    e('v_bfe_u32 v2, v0, 2, 2')
    for t in range(4):
        e(f'v_xor_b32 v3, {t}, v2')
        e(f'v_lshl_add_u32 v{20+t}, v3, 6, v9')
        e(f'v_add_u32 v{24+t}, 0x10000, v{20+t}')
    def batch(st):
        b = [[f'buffer_load_dwordx4 a[{16*st+4*j}:{16*st+4*j+3}], v1, s[8:11], s21 offen offset:{1024*j}'] for j in range(4)]
        b[-1].append('s_add_u32 s21, s21, 4096')
        for j in range(8):
            b.append([f's_add_u32 m0, s24, {(st%4)*32768 + 1024*j}', 's_nop 0',
                      f'buffer_load_dwordx4 v{10+j}, s[4:7], s22 offen lds'])
        b[-1].append(f's_add_u32 s22, s22, {64*8192}')
        return b
    def rd(st, s, t, h):
        q = st % 4
        return (20 + 4 * (q // 2) + (t & 3), (q % 2) * 32768 + (16 * s + 4 * h) * 512 + (t >> 2) * 256)
    gemm(e, 9, 8, lambda t: rng(64 + 16 * t, 16), lambda ks: arng(4 * ks, 4), rd, batch, 28)
    e('s_barrier')
    e(f'''s_lshl_b32 s24, s16, 11
    s_lshl_b32 s26, s17, 19
    s_add_u32 s40, s26, 0
    s_add_u32 s41, s26, 8192
    s_sub_u32 s42, s26, 8192
    s_add_u32 s43, s26, 0
    s_lshr_b32 s26, s16, 1
    s_lshl_b32 s26, s26, 4
    s_and_b32 s27, s16, 1
    s_lshl_b32 s25, s27, 2
    s_add_u32 s26, s26, s25
    s_lshl_b32 s27, s27, 3
    v_lshrrev_b32 v2, 4, v0
    v_and_b32 v3, 15, v0
    v_add_u32 v4, s26, v2
    v_add_u32 v5, s27, v2
    v_xor_b32 v6, v5, v3
    v_lshlrev_b32 v6, 4, v6
    v_lshl_add_u32 v{DK0}, v4, 8, v6
    v_add_u32 v4, 8, v4
    v_add_u32 v5, 4, v5
    v_xor_b32 v6, v5, v3
    v_lshlrev_b32 v6, 4, v6
    v_lshl_add_u32 v6, v4, 8, v6
    v_subrev_u32 v{DK1}, 1024, v6
    s_lshl_b32 s27, s16, 3
    v_add_u32 v4, s27, v2
    v_lshlrev_b32 v5, 2, v2
    v_xor_b32 v5, v5, v3
    v_lshlrev_b32 v5, 4, v5
    v_lshl_add_u32 v{DV}, v4, 8, v5''')
    for i in dma('K', 0, -1) + dma('K', 1, -1): e(i)
    e('s_add_u32 s42, s42, 16384')
    for i in dma('V', 1, -1): e(i)
    for i in dma('K', 0, 0) + dma('V', 0, 0) + dma('K', 1, 0) + dma('V', 1, 0): e(i)
    for i in dma('K', 0, 1) + dma('V', 0, 1) + dma('K', 1, 1): e(i)
    e(f'''v_and_b32 v2, 31, v0
    v_lshrrev_b32 v3, 5, v0
    v_and_b32 v4, 15, v0
    v_xor_b32 v3, v3, v4
    v_lshlrev_b32 v3, 4, v3
    v_lshl_add_u32 v3, v2, 8, v3''')
    for s in range(8):
        e(f'v_xor_b32 v{KA+s}, {32*s}, v3')
    tr_lane_addr(e, 9, 256, 32, 2, 3)
    e('v_add_u32 v9, 0x10000, v9')
    e('v_bfe_u32 v2, v0, 2, 2')
    for t in range(4):
        e(f'v_xor_b32 v3, {t}, v2')
        e(f'v_lshl_add_u32 v{VA+t}, v3, 6, v9')
    e('s_mov_b32 s26, 0x3e0293ee')
    for t in range(8):
        for i in range(16): e(f'v_mul_f32 v{64+16*t+i}, s26, v{64+16*t+i}')
        for i in range(8): e(f'v_cvt_pk_bf16_f32 v{QA+8*t+i}, v{64+16*t+2*i}, v{64+16*t+2*i+1}')
    for i in range(128): e(f'v_accvgpr_write_b32 a{i}, 0')
    e(f's_mov_b32 s46, {THR}')
    e(f's_mov_b32 s47, {THR}')
    e('s_mov_b32 s48, 0')
    e('s_waitcnt vmcnt(14)')
    e('s_barrier')
    for s in range(8): e(kread(0, s))
    for X, S, Q in (('A', SA, QA), ('B', SB, QB)):
        for s in range(8):
            e(f'{MF} {rng(S,16)}, {rng(KF+4*s,4)}, {rng(Q+4*s,4)}, {"0" if s == 0 else rng(S,16)}')
    for s in range(8): e(kread(1, s))
    for f in range(1):
        pass
    for S, N in ((SA, NA), (SB, NB)):
        for i in max16(S, MX): e(i)
        e(f'''v_mov_b32 v2, v{MX}
        v_mov_b32 v3, v{MX}
        v_permlane32_swap_b32 v2, v3
        v_max_f32 v2, v2, v3''')
        for i in range(16):
            e(f'v_sub_f32 v{S+i}, v{S+i}, v2')
            e(f'v_sub_f32 v{N+i}, 0, v2')
    e(f'v_mov_b32 v{LA}, 0')
    e(f'v_mov_b32 v{LB}, 0')
    for i in exp_half(SA, PA, LA, 0) + exp_half(SA, PA, LA, 1): e(i)
    for f in range(NV4):
        for i in vread(0, f): e(i)
    e('s_waitcnt lgkmcnt(0)')
    pro = e.text()
    slows = []
    def body(e):
        for j in range(8):
            qk = lambda S, N, Q: [f'{MF} {rng(S,16)}, {rng(KF+4*s,4)}, {rng(Q+4*s,4)}, {rng(N,16) if s == 0 else rng(S,16)}' for s in range(8)]
            pv = lambda O, P: [f'{MF} {arng(O+16*(f&3),16)}, {rng(VF+4*f,4)}, {rng(P+4*(f>>2),4)}, {arng(O+16*(f&3),16)}' for f in range(8)]
            fx = {}
            g = 0
            for f in range(NV4, 8):
                fx.setdefault(min(g, 7), []).extend(vread(j, f)); g += 1
            group(e, qk(SA, NA, QA), exp_half(SB, PB, LB, 0), fx)
            d = dma('V', 1, j // 2 + 1) if j % 2 == 0 else dma('V', 0, j // 2 + 2)
            fx = {0: d[:3], 1: d[3:]}
            eh = exp_half(SB, PB, LB, 1)
            group(e, pv(0, PA), eh[:10] + interleave(eh[10:], max16(SA, MX)), fx)
            e(f'v_cmp_lt_f32 vcc, s{47 if j == 7 else 46}, v{MX}')
            e(f's_cbranch_vccnz L_slowA{j}')
            e.label(f'L_slowA{j}_back')
            if j % 2 == 0:
                e('s_waitcnt vmcnt(8)')
                e('s_barrier')
            if j == 7:
                e(f'v_mov_b32 v{LAF}, v{LA}')
            d = dma('K', j % 2, j // 2 + 2)
            fx = {s: [kread(j + 2, s - 1)] for s in range(1, 8)}
            fx[0] = d[:3]; fx[1] = fx[1] + d[3:]
            fx[7] = fx[7] + [kread(j + 2, 7)]
            group(e, qk(SB, NB, QB), exp_half(SA, PA, LA, 0), fx)
            fx = {}
            for f in range(NV4):
                fx.setdefault(8 - NV4 + f, []).extend(vread(j + 1, f))
            eh = exp_half(SA, PA, LA, 1)
            group(e, pv(64, PB), eh[:10] + interleave(eh[10:], max16(SB, MX)), fx)
            e(f'v_cmp_lt_f32 vcc, s{47 if j == 7 else 46}, v{MX}')
            e(f's_cbranch_vccnz L_slowB{j}')
            e.label(f'L_slowB{j}_back')
    e.out = []
    body(e)
    e.out = []
    n0 = e.nops
    e.label('L_attn_loop')
    e('s_cmp_eq_u32 s48, 7')
    e(f's_cselect_b32 s47, 0x7f800000, s46')
    body(e)
    print('attn loop nops', e.nops - n0)
    e('s_add_u32 s48, s48, 1')
    e('s_cmp_lt_u32 s48, 8')
    e('s_cbranch_scc1 L_attn_loop')
    e('s_nop 15')
    e(f's_lshl_b32 s25, s20, 18')
    e(f's_lshl_b32 s26, s17, 14')
    e('s_add_u32 s25, s25, s26')
    for L, O in ((LAF, 0), (LB, 64)):
        e(f'''v_mov_b32 v2, v{L}
        v_mov_b32 v3, v{L}
        v_permlane32_swap_b32 v2, v3
        v_add_f32 v2, v2, v3
        v_rcp_f32 v2, v2''')
        for fr in range(8):
            b = 64 + 8 * (fr % 2); d = 80 + 4 * (fr % 4)
            for i in range(8): e(f'v_accvgpr_read_b32 v{b+i}, a{O+8*fr+i}')
            for i in range(8): e(f'v_mul_f32 v{b+i}, v{b+i}, v2')
            for i in range(4): e(f'v_cvt_pk_bf16_f32 v{d+i}, v{b+2*i}, v{b+2*i+1}')
            e(f'buffer_store_dwordx4 {rng(d,4)}, v1, s[12:15], s25 offen offset:{1024*(fr%4)}')
            if fr % 4 == 3: e('s_add_u32 s25, s25, 4096')
    e('s_waitcnt vmcnt(0)')
    e('s_endpgm')
    txt = pro + e.text()
    for j in range(8):
        txt += slow('A', f'L_slowA{j}') + slow('B', f'L_slowB{j}')
    txt += f'L_{name}_end:\n  s_endpgm\n'
    return txt, desc(name, 400, 256), (name, 256, 256, 131072)

NV4 = 2
def interleave(a, b):
    out = []; a = list(a); b = list(b)
    while a or b:
        if a: out.append(a.pop(0))
        if b: out.append(b.pop(0))
    return out
```

```python
from emit import Emit
from k_small import *

def gemm(e, NS, NT, acc, bfrag, rd, batch, ring, RING=6, D=4, extra=None, pre=2, zero=True, st0=0, vm_tail=0):
    issued = []
    def nvm(b): return sum(1 for g in b for i in g if i.startswith('buffer_'))
    for st in range(min(pre, NS)):
        b = batch(st)
        for g in b:
            for i in g: e(i)
        issued.append(nvm(b))
    N = NS * 4 * NT
    seq = [(st, s, t) for st in range(NS) for s in range(4) for t in range(NT)]
    def reads(n):
        st, s, t = seq[n]
        if s == 0 and t == 0:
            later = sum(issued[st + 1:]) + vm_tail
            e(f's_waitcnt vmcnt({min(later, 63)})')
            e('s_barrier')
        r = ring + 4 * (n % RING)
        for h in range(2):
            va, off = rd(st, s, t, h)
            e(f'ds_read_b64_tr_b16 v[{r+2*h}:{r+2*h+1}], v{va} offset:{off}')
    for n in range(D):
        reads(n)
    pendb = []
    extra = list(extra or [])
    per = (len(extra) + N - 1) // N if extra else 0
    for n in range(N):
        st, s, t = seq[n]
        if s == 0 and t == 0 and st + pre < NS:
            b = batch(st + pre)
            pendb = list(b)
            issued.append(nvm(b))
        r = ring + 4 * (n % RING)
        ks = st * 4 + s
        c = '0' if (zero and ks == 0) else acc(t)
        e(f'v_mfma_f32_32x32x16_bf16 {acc(t)}, v[{r}:{r+3}], {bfrag(ks)}, {c}')
        last_of_stage_reads = (n + D < N and seq[n + D][1] == 0 and seq[n + D][2] == 0)
        if last_of_stage_reads:
            while pendb:
                for i in pendb.pop(0): e(i)
        if n + D < N:
            reads(n + D)
        if pendb and n % 2 == 0:
            for i in pendb.pop(0): e(i)
        for _ in range(per):
            if extra: e(extra.pop(0))
    while extra:
        e(extra.pop(0))

def wave_id(e, sreg):
    e(f'v_lshrrev_b32 v1, 6, v0')
    e('s_nop 0')
    e(f'v_readfirstlane_b32 s{sreg}, v1')
    e('v_and_b32 v0, 63, v0')
    e('s_nop 3')

def tr_lane_addr(e, dst, rowb, ds, t1, t2):
    e(f'''v_lshrrev_b32 v{t1}, 5, v0
    v_lshlrev_b32 v{t1}, 3, v{t1}
    v_bfe_u32 v{t2}, v0, 2, 2
    v_add_u32 v{t1}, v{t1}, v{t2}
    v_mul_u32_u24 v{dst}, {rowb}, v{t1}
    v_bfe_u32 v{t2}, v0, 4, 1
    v_mul_u32_u24 v{t2}, {ds}, v{t2}
    v_add_u32 v{dst}, v{dst}, v{t2}
    v_and_b32 v{t2}, 1, v0
    v_lshl_add_u32 v{dst}, v{t2}, 4, v{dst}
    v_bfe_u32 v{t2}, v0, 1, 1
    v_lshl_add_u32 v{dst}, v{t2}, 3, v{dst}''')

def divmod_const(e, q, r, x, d, t):
    magic = (65536 + d - 1) // d
    assert all((x_ * magic) >> 16 == x_ // d for x_ in range(2304))
    e(f'''v_mul_u32_u24 v{q}, {magic}, v{x}
    v_lshrrev_b32 v{q}, 16, v{q}
    v_mul_u32_u24 v{t}, {d}, v{q}
    v_sub_u32 v{r}, v{x}, v{t}''')

def k_proj(down):
    e = Emit(); name = 'k6_down_kernel' if down else 'k3_oproj_kernel'
    KS = 36 if down else 32
    NFX = 288 if down else 256
    NS = KS // 4
    STG = 64 * 576
    head(e, name, 256)
    srd(e, 4, A_WD if down else A_WO, KS * 16 * 8 * 1152)
    srd(e, 8, A_WS, 64 * NFX * 1024, ACT if down else OF)
    srd(e, 12, A_WS, 8 * FR, PART)
    wave_id(e, 16)
    e(f'''s_and_b32 s17, s2, 7
    s_bfe_u32 s18, s2, 0x10003
    s_lshr_b32 s19, s2, 4
    s_lshl_b32 s20, s19, 2
    s_add_u32 s20, s20, s16
    s_mul_i32 s21, s20, {NFX*1024}
    s_mul_i32 s22, s17, {KS*1024}
    s_add_u32 s21, s21, s22
    s_mul_i32 s22, s17, {KS*16*1152}
    s_mul_i32 s23, s18, 576
    s_add_u32 s22, s22, s23
    s_mul_i32 s24, s16, 9216
    s_mul_i32 s25, s17, {FR}
    s_mul_i32 s26, s20, 36864
    s_add_u32 s25, s25, s26
    s_mul_i32 s26, s18, 18432
    s_add_u32 s25, s25, s26
    v_lshlrev_b32 v1, 4, v0''')
    for j in range(9):
        e(f's_mul_i32 s26, s16, 576')
        e(f's_add_u32 s26, s26, {64*j}')
        e(f'v_add_u32 v2, s26, v0')
        divmod_const(e, 3, 4, 2, 36, 5)
        e(f'v_mul_u32_u24 v{10+j}, 1152, v3')
        e(f'v_lshl_add_u32 v{10+j}, v4, 4, v{10+j}')
    tr_lane_addr(e, 20, 576, 32, 2, 3)
    for q in range(1, 4):
        e(f'v_add_u32 v{20+q}, {q*STG}, v20')
    def batch(st):
        b = [[f'buffer_load_dwordx4 a[{16*st+4*j}:{16*st+4*j+3}], v1, s[8:11], s21 offen offset:{1024*j}'] for j in range(4)]
        b[-1].append('s_add_u32 s21, s21, 4096')
        for j in range(9):
            b.append([f's_add_u32 m0, s24, {(st%4)*STG + 1024*j}', 's_nop 0',
                      f'buffer_load_dwordx4 v{10+j}, s[4:7], s22 offen lds'])
        b[-1].append(f's_add_u32 s22, s22, {64*1152}')
        return b
    def rd(st, s, t, h):
        return (20 + st % 4, (16 * s + 4 * h) * 576 + 64 * t)
    acc = lambda t: f'v[{64+16*t}:{64+16*t+15}]'
    gemm(e, NS, 9, acc, lambda ks: f'a[{4*ks}:{4*ks+3}]', rd, batch, 24)
    for t in range(9):
        for a in range(2):
            b = 64 + 16 * t + 8 * a
            d = 24 + 4 * ((2 * t + a) % 4)
            for i in range(4):
                e(f'v_cvt_pk_bf16_f32 v{d+i}, v{b+2*i}, v{b+2*i+1}')
            if (2 * t + a) % 4 == 0 and t:
                e('s_add_u32 s25, s25, 4096')
            e(f'buffer_store_dwordx4 v[{d}:{d+3}], v1, s[12:15], s25 offen offset:{1024*((2*t+a)%4)}')
    e('s_waitcnt vmcnt(0)')
    tail(e, name)
    return e.text(), desc(name, 400, 256), (name, 256, 256, 4 * STG)

def silu_mul(t, base, dst, tmp):
    L = []
    for i in range(8):
        g, u, x = base + i, base + 8 + i, tmp + (i % 4)
        L += [f'v_mul_f32 v{x}, 0xbfb8aa3b, v{g}', f'v_exp_f32 v{x}, v{x}', f'v_mul_f32 v{u}, v{g}, v{u}',
              f'v_add_f32 v{x}, 1.0, v{x}', f'v_rcp_f32 v{x}, v{x}', f'v_mul_f32 v{g}, v{u}, v{x}']
        if i % 2:
            L.append(f'v_cvt_pk_bf16_f32 v{dst+i//2}, v{g-1}, v{g}')
    return L

def k_gateup():
    e = Emit(); name = 'k5_gateup_kernel'
    REG = 64 * 288 + 128
    STG = 2 * 64 * 288 + 256
    head(e, name, 256)
    wave_id(e, 16)
    e('s_cmp_ge_u32 s16, 2')
    e('s_cbranch_scc1 L_k5_up')
    srd(e, 4, A_WG, 576 * 9216)
    e('s_branch L_k5_j')
    e.label('L_k5_up')
    srd(e, 4, A_WU, 576 * 9216)
    e.label('L_k5_j')
    srd(e, 8, A_WS, FR, H2)
    srd(e, 12, A_WS, 64 * 288 * 1024, ACT)
    e(f'''s_and_b32 s17, s2, 7
    s_bfe_u32 s18, s2, 0x10003
    s_lshl_b32 s17, s17, 1
    s_add_u32 s18, s18, s17
    s_lshr_b32 s19, s2, 4
    s_lshl_b32 s20, s19, 2
    s_add_u32 s20, s20, s16
    s_mul_i32 s21, s20, 36864
    s_mul_i32 s22, s18, 576
    s_and_b32 s26, s16, 1
    s_mul_i32 s24, s26, 9216
    s_lshr_b32 s27, s16, 1
    s_mul_i32 s27, s27, {REG}
    s_add_u32 s24, s24, s27
    s_mul_i32 s25, s20, {288*1024}
    s_mul_i32 s27, s18, {18*1024}
    s_add_u32 s25, s25, s27
    v_lshlrev_b32 v1, 4, v0''')
    for j in range(9):
        e(f's_mul_i32 s27, s26, 576')
        e(f's_add_u32 s27, s27, {64*j}')
        e(f'v_add_u32 v2, s27, v0')
        divmod_const(e, 3, 4, 2, 18, 5)
        e(f'v_mul_u32_u24 v{10+j}, 9216, v3')
        e(f'v_lshl_add_u32 v{10+j}, v4, 4, v{10+j}')
    tr_lane_addr(e, 20, 288, REG, 2, 3)
    e(f'v_add_u32 v21, {2*STG}, v20')
    def mk_batch(withx, cb):
        def batch(st):
            b = []
            if withx:
                b = [[f'buffer_load_dwordx4 a[{16*st+4*j}:{16*st+4*j+3}], v1, s[8:11], s21 offen offset:{1024*j}'] for j in range(4)]
                b[-1].append('s_add_u32 s21, s21, 4096')
            for j in range(9):
                b.append([f's_add_u32 m0, s24, {((st+9*cb)%4)*STG + 1024*j}', 's_nop 0',
                          f'buffer_load_dwordx4 v{10+j}, s[4:7], s22 offen lds'])
            b[-1].append(f's_add_u32 s22, s22, {64*9216}')
            if st == 8:
                b[-1].append(f's_sub_u32 s22, s22, {576*9216 - 288}')
            return b
        return batch
    def mk_rd(cb):
        def rd(st, s, t, h):
            q = (st + 9 * cb) % 4
            off = (q % 2) * STG + (16 * s + 4 * h) * 288 + 32 * t
            return (20 + q // 2, off)
        return rd
    bf = lambda ks: f'a[{4*ks}:{4*ks+3}]'
    def epi(base, tile0):
        L = []
        for t in range(9):
            d = 48 + 4 * (t % 2)
            L += silu_mul(t, base + 16 * t, d, 56)
            L.append(f'buffer_store_dwordx4 v[{d}:{d+3}], v1, s[12:15], s25 offen offset:{1024*(t%4)}')
            if t % 4 == 3 or t == 8:
                L.append(f's_add_u32 s25, s25, {4096 if t < 8 else 1024}')
        return L
    acc0 = lambda t: f'v[{64+16*t}:{64+16*t+15}]'
    gemm(e, 9, 9, acc0, bf, mk_rd(0), mk_batch(True, 0), 24)
    e('s_barrier')
    b1 = mk_batch(False, 1)
    pre = [b1(0), b1(1)]
    for b in pre:
        for g in b:
            for i in g: e(i)
    for i in epi(64, 0): e(i)
    first = {'n': 0}
    def b1x(st):
        return [] if st < 2 else b1(st)
    gemm(e, 9, 9, acc0, bf, mk_rd(1), b1x, 24, vm_tail=0)
    for i in epi(64, 1): e(i)
    e('s_waitcnt vmcnt(0)')
    tail(e, name)
    return e.text(), desc(name, 400, 256), (name, 256, 256, 4 * STG)
```

```python
from emit import Emit

MOD, H1, X1, H2, OF, PART, ACT = 0, 0x100000, 0x400000, 0x700000, 0x1000000, 0x2000000, 0x3400000
FR = 64 * 36 * 1024
A_X, A_K, A_V, A_WQ, A_WO, A_WG, A_WU, A_WD, A_C, A_WM, A_OUT, A_WS = 0, 8, 16, 24, 32, 48, 56, 64, 72, 80, 88, 104

def srd(e, r, arg, size, off=0, tmp=4):
    e(f's_load_dwordx2 s[{r}:{r+1}], s[0:1], {arg}')
    e('s_waitcnt lgkmcnt(0)')
    if off:
        e(f's_add_u32 s{r}, s{r}, {off}')
        e(f's_addc_u32 s{r+1}, s{r+1}, 0')
    e(f's_mov_b32 s{r+2}, {size}')
    e(f's_mov_b32 s{r+3}, 0x00020000')

def head(e, name, nwg):
    e.raw(f'.globl {name}\n.p2align 8\n.type {name},@function\n{name}:')
    e(f's_cmp_ge_u32 s2, {nwg}')
    e(f's_cbranch_scc1 L_{name}_end')

def tail(e, name):
    e.label(f'L_{name}_end')
    e('s_endpgm')

def desc(name, vgpr, accum, sgpr=102):
    return f'''.p2align 6
.amdhsa_kernel {name}
  .amdhsa_next_free_vgpr {vgpr}
  .amdhsa_next_free_sgpr {sgpr}
  .amdhsa_accum_offset {accum}
  .amdhsa_group_segment_fixed_size 0
  .amdhsa_kernarg_size 112
  .amdhsa_user_sgpr_count 2
  .amdhsa_user_sgpr_kernarg_segment_ptr 1
  .amdhsa_system_sgpr_workgroup_id_x 1
.end_amdhsa_kernel
'''

def unpack(e, dst, src, n, smask):
    for i in range(n):
        e(f'v_lshlrev_b32 v{dst+2*i}, 16, v{src+i}')
        e(f'v_and_b32 v{dst+2*i+1}, {smask}, v{src+i}')

def k_mod():
    e = Emit(); name = 'k0_mod_kernel'
    head(e, name, 108)
    srd(e, 4, A_WM, 576 * 3456 * 2)
    srd(e, 8, A_C, 576 * 2)
    srd(e, 12, A_WS, 3456 * 4, MOD)
    e('''s_mov_b32 s16, 0xffff0000
    s_lshl_b32 s17, s2, 6
    v_and_b32 v1, 3, v0
    v_lshrrev_b32 v2, 2, v0
    v_mul_u32_u24 v3, 9, v2
    v_mul_u32_u24 v4, 6912, v3
    v_lshl_add_u32 v4, v1, 4, v4
    v_lshlrev_b32 v5, 1, v3''')
    for j in range(9):
        e(f'buffer_load_ushort v{10+j}, v5, s[8:11], 0 offen offset:{2*j}')
    for j in range(9):
        e(f'buffer_load_dwordx4 v[{20+4*j}:{23+4*j}], v4, s[4:7], s17 offen')
        if j < 8:
            e('v_add_u32 v4, 6912, v4')
    e('s_waitcnt vmcnt(9)')
    for j in range(9):
        e(f'v_lshlrev_b32 v{10+j}, 16, v{10+j}')
        e(f'v_mul_f32 v6, 0xbfb8aa3b, v{10+j}')
        e('v_exp_f32 v6, v6')
        e('v_add_f32 v6, 1.0, v6')
        e('v_rcp_f32 v6, v6')
        e(f'v_mul_f32 v6, v{10+j}, v6')
        e('v_cvt_pk_bf16_f32 v6, v6, v6')
        e(f'v_lshlrev_b32 v{10+j}, 16, v6')
    for i in range(8):
        e(f'v_mov_b32 v{60+i}, 0')
    for j in range(9):
        e(f's_waitcnt vmcnt({8-j})')
        unpack(e, 70, 20 + 4 * j, 4, 's16')
        for i in range(8):
            e(f'v_fmac_f32 v{60+i}, v{70+i}, v{10+j}')
    e('''v_lshlrev_b32 v6, 7, v2
    v_lshl_add_u32 v6, v1, 5, v6
    ds_write_b128 v6, v[60:63]
    ds_write_b128 v6, v[64:67] offset:16
    s_waitcnt lgkmcnt(0)
    s_barrier
    v_and_b32 v1, 31, v0
    v_lshrrev_b32 v2, 5, v0
    v_lshlrev_b32 v6, 10, v2
    v_lshl_add_u32 v6, v1, 2, v6''')
    for i in range(8):
        e(f'ds_read_b32 v{20+i}, v6 offset:{128*i}')
    for i in range(1, 8):
        e(f'v_add_f32 v20, v20, v{20+i}')
    e('''v_lshlrev_b32 v6, 2, v0
    ds_write_b32 v6, v20 offset:8192
    s_waitcnt lgkmcnt(0)
    s_barrier
    v_lshlrev_b32 v6, 2, v1''')
    for i in range(8):
        e(f'ds_read_b32 v{20+i}, v6 offset:{8192+128*i}')
    for i in range(1, 8):
        e(f'v_add_f32 v20, v20, v{20+i}')
    e('''v_cvt_pk_bf16_f32 v20, v20, v20
    v_lshlrev_b32 v20, 16, v20
    s_lshl_b32 s17, s2, 7
    v_cmp_gt_u32 vcc, 32, v0
    s_and_saveexec_b64 s[18:19], vcc
    s_cbranch_execz L_k0_skip
    buffer_store_dword v20, v6, s[12:15], s17 offen
    s_waitcnt vmcnt(0)''')
    e.label('L_k0_skip')
    tail(e, name)
    return e.text(), desc(name, 80, 80), (name, 108, 256, 9216)

def row_reduce(e, v, ldsoff, t1, t2, vwaddr, vraddr):
    e(f'v_add_f32_dpp v{v}, v{v}, v{v} row_ror:8 row_mask:0xf bank_mask:0xf')
    for sw in ('v_permlane16_swap_b32', 'v_permlane32_swap_b32'):
        e(f'v_mov_b32 v{t1}, v{v}')
        e(f'v_mov_b32 v{t2}, v{v}')
        e(f'{sw} v{t1}, v{t2}')
        e(f'v_add_f32 v{v}, v{t1}, v{t2}')
    e(f'ds_write_b32 v{vwaddr}, v{v} offset:{ldsoff}')
    e('s_waitcnt lgkmcnt(0)')
    e('s_barrier')
    for w in range(9):
        e(f'ds_read_b32 v{70+w}, v{vraddr} offset:{ldsoff+w*256}')
    e(f'v_add_f32 v{v}, v70, v71')
    for w in range(2, 9):
        e(f'v_add_f32 v{v}, v{v}, v{70+w}')

def k_row(mode):
    e = Emit(); name = {1: 'k1_ln_kernel', 2: 'k4_red_kernel', 3: 'k7_red_kernel'}[mode]
    head(e, name, 256)
    if mode == 3:
        srd(e, 4, A_WS, FR, X1)
    else:
        srd(e, 4, A_X, FR)
    srd(e, 8, A_WS, 3456 * 4, MOD)
    srd(e, 12, A_WS, 8 * FR, PART)
    if mode == 3:
        srd(e, 16, A_OUT, FR)
    else:
        srd(e, 16, A_WS, FR, H1 if mode == 1 else H2)
    srd(e, 20, A_WS, FR, X1)
    e('''s_mov_b32 s24, 0xffff0000
    v_and_b32 v1, 7, v0
    v_bfe_u32 v2, v0, 3, 1
    v_lshrrev_b32 v3, 4, v0
    s_lshl_b32 s25, s2, 3
    v_add_u32 v4, s25, v1
    v_mul_u32_u24 v4, 1152, v4
    v_lshl_add_u32 v4, v3, 5, v4
    v_lshl_add_u32 v4, v2, 4, v4
    s_lshr_b32 s26, s2, 2
    s_mul_i32 s26, s26, 36864
    s_and_b32 s27, s2, 3
    s_lshl_b32 s27, s27, 7
    s_add_u32 s26, s26, s27
    v_lshlrev_b32 v5, 10, v3
    v_lshl_add_u32 v5, v2, 9, v5
    v_lshl_add_u32 v5, v1, 4, v5
    v_add_u32 v5, s26, v5
    v_lshlrev_b32 v6, 6, v3
    v_lshl_add_u32 v6, v2, 5, v6
    v_lshlrev_b32 v7, 2, v0
    v_lshlrev_b32 v8, 2, v1''')
    e('buffer_load_dwordx4 v[10:13], v4, s[4:7], 0 offen')
    def modload(idx, dst):
        e(f's_mov_b32 s28, {idx*2304}')
        e(f'buffer_load_dwordx4 v[{dst}:{dst+3}], v6, s[8:11], s28 offen')
        e(f'buffer_load_dwordx4 v[{dst+4}:{dst+7}], v6, s[8:11], s28 offen offset:16')
    if mode >= 2:
        for p in range(8):
            e(f's_mov_b32 s28, {p*FR}')
            e(f'buffer_load_dwordx4 v[{80+4*p}:{83+4*p}], v5, s[12:15], s28 offen')
        modload(2 if mode == 2 else 5, 40)
    if mode <= 2:
        modload(0 if mode == 1 else 3, 48)
        modload(1 if mode == 1 else 4, 56)
    e('s_waitcnt vmcnt(0)')
    unpack(e, 20, 10, 4, 's24')
    if mode >= 2:
        unpack(e, 30, 80, 4, 's24')
        for p in range(1, 8):
            unpack(e, 64, 80 + 4 * p, 4, 's24')
            for i in range(8):
                e(f'v_add_f32 v{30+i}, v{30+i}, v{64+i}')
        for i in range(4):
            e(f'v_cvt_pk_bf16_f32 v{64+i}, v{30+2*i}, v{31+2*i}')
        unpack(e, 30, 64, 4, 's24')
        for i in range(8):
            e(f'v_mul_f32 v{30+i}, v{30+i}, v{40+i}')
        for i in range(4):
            e(f'v_cvt_pk_bf16_f32 v{64+i}, v{30+2*i}, v{31+2*i}')
        unpack(e, 30, 64, 4, 's24')
        for i in range(8):
            e(f'v_add_f32 v{20+i}, v{20+i}, v{30+i}')
        for i in range(4):
            e(f'v_cvt_pk_bf16_f32 v{64+i}, v{20+2*i}, v{21+2*i}')
        if mode == 3:
            e('buffer_store_dwordx4 v[64:67], v4, s[16:19], 0 offen')
        else:
            e('buffer_store_dwordx4 v[64:67], v4, s[20:23], 0 offen')
            unpack(e, 20, 64, 4, 's24')
    if mode <= 2:
        e('v_add_f32 v9, v20, v21')
        for i in range(2, 8):
            e(f'v_add_f32 v9, v9, v{20+i}')
        row_reduce(e, 9, 0, 14, 15, 7, 8)
        e('v_mul_f32 v9, 0x3ae38e39, v9')
        for i in range(8):
            e(f'v_sub_f32 v{20+i}, v{20+i}, v9')
        e('v_mul_f32 v9, v20, v20')
        for i in range(1, 8):
            e(f'v_fmac_f32 v9, v{20+i}, v{20+i}')
        row_reduce(e, 9, 4096, 14, 15, 7, 8)
        e('v_mul_f32 v9, 0x3ae38e39, v9')
        e('v_add_f32 v9, 0x3727c5ac, v9')
        e('v_rsq_f32 v9, v9')
        for i in range(8):
            e(f'v_mul_f32 v{20+i}, v{20+i}, v9')
            e(f'v_add_f32 v{56+i}, 1.0, v{56+i}')
        for i in range(8):
            e(f'v_fma_f32 v{20+i}, v{20+i}, v{56+i}, v{48+i}')
        for i in range(4):
            e(f'v_cvt_pk_bf16_f32 v{68+i}, v{20+2*i}, v{21+2*i}')
        e('buffer_store_dwordx4 v[68:71], v5, s[16:19], 0 offen')
    e('s_waitcnt vmcnt(0)')
    tail(e, name)
    return e.text(), desc(name, 112, 112), (name, 256, 576, 8192)
```

```python
import sys
from k_small import *
from k_gemm import *
from k_attn import *
NAME = 'adaLN_cond__gqa_block_cached__swiglu_ffn__prompt'
hdr = open(f'cdna_kernels/{NAME}.s.ref').read().split('; Override launch')[0]
ks = [k_row(1), k_attn(), k_proj(False), k_row(2), k_gateup(), k_proj(True), k_row(3)]
out = hdr
for t, d, (n, g, b, l) in ks:
    out += f'; @launch kernel={n} grid=({g},1,1) block=({b},1,1) lds={l}\n'
out += '.amdgcn_target "amdgcn-amd-amdhsa--gfx950"\n.text\n'
for t, d, _ in ks: out += t
out += '.section .rodata,"a"\n'
for t, d, _ in ks: out += d
path = sys.argv[1] if len(sys.argv) > 1 else f'cdna_kernels/{NAME}.s'
open(path, 'w').write(out)
print('written', path, len(out))
```

```python
import re, os
def OPT(k): return k in os.environ.get('OPT', '').split(',')

def regs_of(tok):
    tok = tok.strip()
    neg = tok.lstrip('-')
    if neg.startswith('abs('):
        neg = neg[4:-1]
    m = re.fullmatch(r'([va])(\d+)', neg)
    if m:
        return [(m.group(1), int(m.group(2)))]
    m = re.fullmatch(r'([va])\[(\d+):(\d+)\]', neg)
    if m:
        return [(m.group(1), i) for i in range(int(m.group(2)), int(m.group(3)) + 1)]
    return []

TRANS = ('v_exp_f32', 'v_log_f32', 'v_rcp_f32', 'v_rsq_f32', 'v_sqrt_f32')

def parse(line):
    s = line.split(';')[0].strip()
    if not s or s.endswith(':') or s.startswith('.'):
        return None
    parts = s.split(None, 1)
    mn = parts[0]
    ops = [o.strip() for o in parts[1].split(',')] if len(parts) > 1 else []
    ops = [o.split()[0] if o and not o.startswith('s[') else o for o in ops]
    R = [regs_of(o) for o in ops]
    flat = lambda L: [r for x in L for r in x]
    if mn.startswith('v_mfma'):
        return ('mfma', R[0], flat(R[1:3]), mn, R[3])
    if mn.startswith('v_permlane'):
        return ('valu', flat(R[:2]), flat(R[:2]), mn, [])
    if mn.startswith('v_cmp') or mn.startswith('v_readfirstlane') or mn.startswith('v_readlane'):
        return ('valu', [], flat(R), mn, [])
    if mn.startswith('v_'):
        src = flat(R[1:])
        if mn.startswith('v_fmac') or 'dpp' in s or 'row_' in s:
            src = src + R[0]
        return ('valu', R[0], src, mn, [])
    if mn.startswith('ds_read'):
        return ('dsr', R[0], flat(R[1:]), mn, [])
    if mn.startswith('ds_'):
        return ('dsw', [], flat(R), mn, [])
    if mn.startswith('buffer_load'):
        if s.rstrip().endswith(' lds'):
            return ('vmem', [], flat(R), mn, [])
        return ('vld', R[0], flat(R[1:]), mn, [])
    if mn.startswith('buffer_store'):
        return ('vst', [], flat(R), mn, [])
    return ('other', [], [], mn, [])


class Emit:
    def __init__(self):
        self.out = []
        self.pend = []
        self.n = 0
        self.mf = {}
        self.mc = {}
        self.vw = {}
        self.st = {}
        self.sw = -99
        self.nops = 0

    def raw(self, s):
        self.out.append(s)

    def label(self, s):
        self.out.append(s + ':')

    def _nop(self, k):
        self.nops += k
        while k > 0:
            c = min(k, 16)
            self.out.append('  s_nop %d' % (c - 1))
            self.n += c
            k -= c

    def wait_lgkm(self, k=0):
        if len(self.pend) > k:
            self.pend = self.pend[len(self.pend) - k:] if k else []
        self.out.append('  s_waitcnt lgkmcnt(%d)' % k)
        self.n += 1

    def __call__(self, line):
        for l in line.strip().split('\n'):
            self.one(l.strip())

    def one(self, line):
        if OPT('NOMFMA') and line.startswith('v_mfma'): return
        if OPT('NODMA') and line.startswith('buffer_load') and line.endswith(' lds'): return
        if OPT('NOXLD') and line.startswith('buffer_load_dwordx4 a['): return
        if OPT('NODSR') and line.startswith('ds_read_b64_tr'): return
        if OPT('NOMAX') and line.startswith(('v_max3', 'v_max_f32')) and 'v46' in line.split(',')[0]: return
        if OPT('NOEXP') and line.startswith('v_exp'): return
        if OPT('NOVALU') and line.startswith(('v_exp', 'v_add_f32', 'v_max', 'v_cvt_pk')): return
        if OPT('NOBAR') and line.startswith('s_barrier'): return
        if OPT('NOKR') and line.startswith('ds_read_b128'): return
        if OPT('NOST') and line.startswith('buffer_store'): return
        if line.startswith('buffer_store_dwordx4'):
            line = line + ' ' + os.environ.get('STF', 'sc0 sc1')
        p = parse(line)
        if p is None:
            self.out.append(line)
            return
        kind, dst, src, mn, srcc = p
        S = line.split(';')[0]
        if mn == 's_waitcnt':
            m = re.search(r'lgkmcnt\((\d+)\)', line)
            if m:
                k = int(m.group(1))
                self.pend = self.pend[len(self.pend) - k:] if (k and len(self.pend) > k) else (self.pend if k else [])
        touched = set(dst) | set(src) | set(srcc)
        idx = -1
        for i, d in enumerate(self.pend):
            if d & touched:
                idx = i
        if idx >= 0:
            k = len(self.pend) - 1 - idx
            self.wait_lgkm(min(k, 15))
        need = 0
        for r in touched:
            if r in self.mf:
                i, d = self.mf[r]
                if kind == 'mfma' and r in srcc and r not in src and tuple(d) == tuple(srcc):
                    continue
                need = max(need, 12 - (self.n - i - 1))
        if kind == 'mfma':
            for r in set(src) | set(srcc):
                if r in self.vw:
                    need = max(need, 2 - (self.n - self.vw[r][0] - 1))
        if kind in ('valu',):
            for r in src:
                if r in self.vw:
                    i, tr = self.vw[r]
                    if tr and not mn.startswith(TRANS):
                        need = max(need, 1 - (self.n - i - 1))
                    if mn.startswith('v_permlane') or 'dpp' in S or 'row_' in S:
                        need = max(need, 2 - (self.n - i - 1))
                    if mn.startswith('v_readfirstlane') or mn.startswith('v_readlane'):
                        need = max(need, 1 - (self.n - i - 1))
            for r in dst:
                if r in self.mc:
                    need = max(need, 7 - (self.n - self.mc[r] - 1))
                if r in self.st:
                    need = max(need, 2 - (self.n - self.st[r] - 1))
            if mn.startswith('v_cndmask') or re.search(r'\bs\d+|vcc', S.split(None, 1)[1].split(',', 1)[-1]):
                need = max(need, 2 - (self.n - self.sw - 1))
        if kind in ('vmem', 'vld', 'vst'):
            need = max(need, 5 - (self.n - self.sw - 1))
        if mn.startswith('s_cbranch_vcc'):
            need = max(need, 1 - (self.n - self.sw - 1))
        if need > 0:
            self._nop(need)
        self.out.append('  ' + line)
        i = self.n
        m = re.fullmatch(r's_nop (\d+)', S.strip())
        self.n += (int(m.group(1)) + 1) if m else 1
        if kind == 'mfma':
            for r in dst:
                self.mf[r] = (i, dst)
                self.vw.pop(r, None)
            for r in srcc:
                self.mc[r] = i
        else:
            for r in dst:
                self.mf.pop(r, None)
        if kind == 'valu':
            for r in dst:
                self.vw[r] = (i, mn.startswith(TRANS))
            if mn.startswith('v_cmp') or mn.startswith('v_readfirstlane') or mn.startswith('v_readlane'):
                self.sw = i
        if kind in ('dsr', 'vld'):
            for r in dst:
                self.vw.pop(r, None)
        if kind == 'dsr':
            self.pend.append(set(dst))
        if kind == 'dsw':
            self.pend.append(set())
        if kind == 'vst':
            for r in src:
                self.st[r] = i

    def stamp(self, i, force=False):
        if OPT('STAMP') or force:
            self('s_waitcnt lgkmcnt(0)')
            self(f's_memtime s[{60+2*i}:{61+2*i}]')
            self(f's_memrealtime s[{86 if i == 0 else 88}:{87 if i == 0 else 89}]')
            self('s_waitcnt lgkmcnt(0)')

    def stamps_out(self, n, slot, force=False):
        if OPT('STAMP') or force:
            self('s_load_dwordx2 s[80:81], s[0:1], 96')
            self('s_waitcnt lgkmcnt(0)')
            self('s_mov_b32 s82, 256')
            self('s_mov_b32 s83, 0x20000')
            self('s_cmp_lg_u32 s2, 17')
            self(f's_cbranch_scc1 L_nostamp{slot}')
            self('s_cmp_lg_u32 s16, 0')
            self(f's_cbranch_scc1 L_nostamp{slot}')
            for i in range(1, n):
                self(f's_sub_u32 s84, s{60+2*i}, s{60+2*(i-1)}')
                self(f'v_mov_b32 v2, s84')
                self(f'v_mov_b32 v3, {4*(slot+i-1)}')
                self('buffer_store_dword v2, v3, s[80:83], 0 offen')
            self('s_sub_u32 s84, s88, s86')
            self('v_mov_b32 v2, s84')
            self(f'v_mov_b32 v3, {4*(slot+n-1)}')
            self('buffer_store_dword v2, v3, s[80:83], 0 offen')
            self('s_waitcnt vmcnt(0)')
            self.label(f'L_nostamp{slot}')

    def text(self):
        return '\n'.join(self.out) + '\n'
```

```python
import os
from emit import Emit, OPT
from k_small import *
from k_gemm import gemm, wave_id, tr_lane_addr

SA, SB, NA, NB, KF, VF, PA, PB = 64, 80, 96, 112, 128, 160, 28, 36
LA, LB, MX, LAF = 44, 45, 46, 48
QA, QB = 192, 224
KA, VA = 10, 18
DK0, DK1, DV = 22, 23, 24
THR = 0x42700000
rng = lambda b, n: f'v[{b}:{b+n-1}]'
arng = lambda b, n: f'a[{b}:{b+n-1}]'
MF = 'v_mfma_f32_32x32x16_bf16'

def exp_half(S, P, L, half):
    b = S + 8 * half; p = P + 4 * half
    E = lambda i: f'v_exp_f32 v{b+i}, v{b+i}'
    A = lambda i: f'v_add_f32 v{L}, v{L}, v{b+i}'
    C = lambda i: f'v_cvt_pk_bf16_f32 v{p+i}, v{b+2*i}, v{b+2*i+1}'
    return [E(0), E(1), A(0), E(2), A(1), E(3), A(2), C(0), E(4), A(3), E(5), A(4), C(1), E(6), A(5), E(7), A(6), C(2), A(7), C(3)]

def max16(S, m):
    L = [f'v_max3_f32 v{m}, v{S}, v{S+1}, v{S+2}']
    for i in range(3, 15, 2):
        L.append(f'v_max3_f32 v{m}, v{m}, v{S+i}, v{S+i+1}')
    L.append(f'v_max_f32 v{m}, v{m}, v{S+15}')
    return L

def kslot(j): return (((j - 2) // 2) % 4) * 16384 + (j % 2) * 8192
def vslot(j): return (((j - 1) // 2) % 4) * 16384 + ((j - 1) % 2) * 8192
def kread(j, s): return f'ds_read_b128 {rng(KF+4*s, 4)}, v{KA+s} offset:{kslot(j)}'
def vread(j, f):
    u, t = f >> 2, f & 3
    return [f'ds_read_b64_tr_b16 {rng(VF+4*f+2*h, 2)}, v{VA+t} offset:{vslot(j) + (16*u+4*h)*256}' for h in range(2)]
def dma(kind, tau, stage):
    q = stage % 4
    if kind == 'K':
        s = 40 + tau
        return [f's_add_u32 m0, s24, {q*16384 + tau*8192}', 's_nop 0',
                f'buffer_load_dwordx4 v{DK0}, s[28:31], s{s} offen lds',
                f'buffer_load_dwordx4 v{DK1}, s[28:31], s{s} offen offset:1024 lds', f's_add_u32 s{s}, s{s}, 16384']
    s = 42 + tau
    return [f's_add_u32 m0, s24, {65536 + q*16384 + tau*8192}', 's_nop 0',
            f'buffer_load_dwordx4 v{DV}, s[32:35], s{s} offen lds',
            f'buffer_load_dwordx4 v{DV}, s[32:35], s{s} offen offset:1024 lds', f's_add_u32 s{s}, s{s}, 16384']

CD = int(os.environ.get('CD', 24))
def cost(i):
    if i.startswith('v_exp'): return 8
    if i.startswith('buffer_'): return CD
    return 4

def half(e, mfmas, main, mx, mx0, fixed, post):
    n = len(mfmas)
    fc = [sum(cost(i) for i in fixed.get(g, []) + post.get(g, [])) for g in range(n)]
    cap = [max(0, 24 - c) for c in fc]
    LG = n - 1 - int(os.environ.get('EMPTY', 1))
    for g in range(LG + 1, n): cap[g] = 0
    W = sum(cost(i) for i in main + mx)
    tot = sum(cap); done = 0; cum = 0
    main = list(main); mx = list(mx); tog = 0
    MXR = int(os.environ.get('MXR', 100))
    for g in range(n):
        e(mfmas[g])
        for i in fixed.get(g, []): e(i)
        cum += cap[g]
        while main or (mx and g >= mx0):
            pick = mx if (mx and g >= mx0 and (not main or tog % MXR != MXR - 1)) else main or mx
            tog += 1
            c = cost(pick[0])
            if g < LG and done + c / 2 > W * cum / tot: break
            e(pick.pop(0)); done += c
        for i in post.get(g, []): e(i)

def group(e, mfmas, fill, fixed=None):
    n = len(mfmas); fixed = fixed or {}
    cost = lambda i: 8 if i.startswith('v_exp') else 4
    tot = sum(cost(i) for i in fill) + sum(cost(i) for v in fixed.values() for i in v)
    done = 0; fill = list(fill)
    for g, m in enumerate(mfmas):
        e(m)
        for i in fixed.get(g, []):
            e(i); done += cost(i)
        while fill and (done + cost(fill[0]) / 2 <= tot * (g + 1) / n or g == n - 1):
            i = fill.pop(0); e(i); done += cost(i)

def slow(X, lbl, first=False):
    S, N, L, O = (SA, NA, LA, 0) if X == 'A' else (SB, NB, LB, 64)
    e = Emit()
    e.label(lbl)
    e('s_nop 15')
    e(f'v_mov_b32 v2, v{MX}')
    e(f'v_mov_b32 v3, v{MX}')
    e('v_permlane32_swap_b32 v2, v3')
    e('v_max_f32 v2, v2, v3')
    e('v_max_f32 v2, 0, v2')
    e('v_sub_f32 v3, 0, v2')
    e('v_exp_f32 v3, v3')
    for i in range(16):
        e(f'v_sub_f32 v{S+i}, v{S+i}, v2')
        e(f'v_sub_f32 v{N+i}, v{N+i}, v2')
    e(f'v_mul_f32 v{L}, v{L}, v3')
    for i in range(0, 64, 4):
        for k in range(4): e(f'v_accvgpr_read_b32 v{4+k}, a{O+i+k}')
        for k in range(4): e(f'v_mul_f32 v{4+k}, v{4+k}, v3')
        for k in range(4): e(f'v_accvgpr_write_b32 a{O+i+k}, v{4+k}')
    e('s_nop 3')
    e(f's_branch {lbl}_back')
    return e.text()

def k_attn():
    e = Emit(); name = 'k2_attn_kernel'
    head(e, name, 256)
    srd(e, 4, A_WQ, 576 * 8192)
    srd(e, 8, A_WS, FR, H1)
    srd(e, 12, A_WS, 64 * 256 * 1024, OF)
    srd(e, 28, A_K, 16 * 524288)
    srd(e, 32, A_V, 16 * 524288)
    srd(e, 36, A_WO, 4096 * 1152)
    srd(e, 52, A_WG, 576 * 9216)
    srd(e, 56, A_WU, 576 * 9216)
    srd(e, 96, A_WD, 4608 * 1152)
    wave_id(e, 16)
    e.stamp(0)
    e(f'''s_and_b32 s17, s2, 7
    s_lshl_b32 s17, s17, 1
    s_bfe_u32 s18, s2, 0x10003
    s_add_u32 s17, s17, s18
    s_lshr_b32 s18, s2, 4
    s_lshl_b32 s20, s18, 2
    s_add_u32 s20, s20, s16
    s_mul_i32 s21, s20, 36864
    s_lshl_b32 s22, s17, 9
    s_lshl_b32 s24, s16, 13
    v_lshlrev_b32 v1, 4, v0''')
    for j in range(8):
        e(f'''s_lshl_b32 s26, s16, 4
        s_add_u32 s26, s26, {2*j}
        v_lshrrev_b32 v2, 5, v0
        v_add_u32 v2, s26, v2
        v_and_b32 v3, 3, v2
        v_lshlrev_b32 v3, 2, v3
        v_and_b32 v4, 31, v0
        v_xor_b32 v3, v3, v4
        v_lshlrev_b32 v2, 13, v2
        v_lshl_add_u32 v{10+j}, v3, 4, v2''')
    tr_lane_addr(e, 9, 512, 32, 2, 3)
    e('v_bfe_u32 v2, v0, 2, 2')
    for t in range(4):
        e(f'v_xor_b32 v3, {t}, v2')
        e(f'v_lshl_add_u32 v{20+t}, v3, 6, v9')
        e(f'v_add_u32 v{24+t}, 0x10000, v{20+t}')
    def xl(st):
        return [f'buffer_load_dwordx4 a[{16*st+4*j}:{16*st+4*j+3}], v1, s[8:11], s21 offen offset:{1024*j}' for j in range(4)] + ['s_add_u32 s21, s21, 4096']
    def batch(st):
        b = []
        for j in range(8):
            b.append([f's_add_u32 m0, s24, {(st%4)*32768 + 1024*j}', 's_nop 0',
                      f'buffer_load_dwordx4 v{10+j}, s[4:7], s22 offen lds'])
        b[-1].append(f's_add_u32 s22, s22, {64*8192}')
        return b
    def rd(st, s, t, h):
        q = st % 4
        return (20 + 4 * (q // 2) + (t & 3), (q % 2) * 32768 + (16 * s + 4 * h) * 512 + (t >> 2) * 256)
    gemm(e, 9, 8, lambda t: rng(64 + 16 * t, 16), lambda ks: arng(4 * ks, 4), rd, batch, xl, 28)
    e('s_barrier')
    e.stamp(1)
    e(f'''s_lshl_b32 s24, s16, 11
    s_lshl_b32 s26, s17, 19
    s_add_u32 s40, s26, 0
    s_add_u32 s41, s26, 8192
    s_sub_u32 s42, s26, 8192
    s_add_u32 s43, s26, 0
    s_lshr_b32 s26, s16, 1
    s_lshl_b32 s26, s26, 4
    s_and_b32 s27, s16, 1
    s_lshl_b32 s25, s27, 2
    s_add_u32 s26, s26, s25
    s_lshl_b32 s27, s27, 3
    v_lshrrev_b32 v2, 4, v0
    v_and_b32 v3, 15, v0
    v_add_u32 v4, s26, v2
    v_add_u32 v5, s27, v2
    v_xor_b32 v6, v5, v3
    v_lshlrev_b32 v6, 4, v6
    v_lshl_add_u32 v{DK0}, v4, 8, v6
    v_add_u32 v4, 8, v4
    v_add_u32 v5, 4, v5
    v_xor_b32 v6, v5, v3
    v_lshlrev_b32 v6, 4, v6
    v_lshl_add_u32 v6, v4, 8, v6
    v_subrev_u32 v{DK1}, 1024, v6
    s_lshl_b32 s27, s16, 3
    v_add_u32 v4, s27, v2
    v_lshlrev_b32 v5, 2, v2
    v_xor_b32 v5, v5, v3
    v_lshlrev_b32 v5, 4, v5
    v_lshl_add_u32 v{DV}, v4, 8, v5''')
    for i in dma('K', 0, -1) + dma('K', 1, -1): e(i)
    e('s_add_u32 s42, s42, 16384')
    for i in dma('V', 1, -1): e(i)
    for i in dma('K', 0, 0) + dma('V', 0, 0) + dma('K', 1, 0) + dma('V', 1, 0): e(i)
    for i in dma('K', 0, 1) + dma('V', 0, 1) + dma('K', 1, 1): e(i)
    e(f'''v_and_b32 v2, 31, v0
    v_lshrrev_b32 v3, 5, v0
    v_and_b32 v4, 15, v0
    v_xor_b32 v3, v3, v4
    v_lshlrev_b32 v3, 4, v3
    v_lshl_add_u32 v3, v2, 8, v3''')
    for s in range(8):
        e(f'v_xor_b32 v{KA+s}, {32*s}, v3')
    tr_lane_addr(e, 9, 256, 32, 2, 3)
    e('v_add_u32 v9, 0x10000, v9')
    e('v_bfe_u32 v2, v0, 2, 2')
    for t in range(4):
        e(f'v_xor_b32 v3, {t}, v2')
        e(f'v_lshl_add_u32 v{VA+t}, v3, 6, v9')
    for t in range(8):
        for i in range(8): e(f'v_cvt_pk_bf16_f32 v{QA+8*t+i}, v{64+16*t+2*i}, v{64+16*t+2*i+1}')
    for i in range(128): e(f'v_accvgpr_write_b32 a{i}, 0')
    e('s_mul_i32 s49, s2, 20736')
    e('s_mul_i32 s50, s16, 5184')
    e('s_add_u32 s49, s49, s50')
    e('s_mul_i32 s51, s2, 18432')
    e('s_mul_i32 s50, s16, 4608')
    e('s_add_u32 s51, s51, s50')
    e(f's_mov_b32 s46, {THR}')
    e(f's_mov_b32 s47, {THR}')
    e('s_mov_b32 s48, 0')
    e('s_waitcnt vmcnt(14)')
    e('s_barrier')
    if not OPT('NOPF'): e('buffer_load_dwordx4 v[52:55], v1, s[36:39], s51 offen')
    for s in range(8): e(kread(0, s))
    for X, S, Q in (('A', SA, QA), ('B', SB, QB)):
        for s in range(8):
            e(f'{MF} {rng(S,16)}, {rng(KF+4*s,4)}, {rng(Q+4*s,4)}, {"0" if s == 0 else rng(S,16)}')
    for s in range(8): e(kread(1, s))
    for f in range(1):
        pass
    for S, N in ((SA, NA), (SB, NB)):
        for i in max16(S, MX): e(i)
        e(f'''v_mov_b32 v2, v{MX}
        v_mov_b32 v3, v{MX}
        v_permlane32_swap_b32 v2, v3
        v_max_f32 v2, v2, v3''')
        for i in range(16):
            e(f'v_sub_f32 v{S+i}, v{S+i}, v2')
            e(f'v_sub_f32 v{N+i}, 0, v2')
    e(f'v_mov_b32 v{LA}, 0')
    e(f'v_mov_b32 v{LB}, 0')
    for i in exp_half(SA, PA, LA, 0) + exp_half(SA, PA, LA, 1): e(i)
    for f in range(NV4):
        for i in vread(0, f): e(i)
    e('s_waitcnt lgkmcnt(0)')
    e.stamp(2)
    pro = e.text()
    slows = []
    def body(e):
        for j in range(8):
            qk = lambda S, N, Q: [f'{MF} {rng(S,16)}, {rng(KF+4*s,4)}, {rng(Q+4*s,4)}, {rng(N,16) if s == 0 else rng(S,16)}' for s in range(8)]
            pv = lambda O, P: [f'{MF} {arng(O+16*(f&3),16)}, {rng(VF+4*f,4)}, {rng(P+4*(f>>2),4)}, {arng(O+16*(f&3),16)}' for f in range(8)]
            T = f's{47 if j == 7 else 46}'
            d = dma('V', 1, j // 2 + 1) if j % 2 == 0 else dma('V', 0, j // 2 + 2)
            fx = {g: vread(j, 4 + g) for g in range(4)}
            fx[5] = [d[2]]; fx[6] = [d[3]]
            po = {4: [d[0]], 6: [d[4]], 7: ['s_waitcnt lgkmcnt(0)']}
            half(e, qk(SA, NA, QA) + pv(0, PA), exp_half(SB, PB, LB, 0) + exp_half(SB, PB, LB, 1),
                 max16(SA, MX) + [f'v_cmp_lt_f32 vcc, {T}, v{MX}'], 10, fx, po)
            if j % 2 == 0:
                e(f's_waitcnt vmcnt({8 if OPT("NOPF") else 9})')
            if j == 7:
                e(f'v_mov_b32 v{LAF}, v{LA}')
            else:
                e('s_nop 0')
            if not OPT('NOCHK'): e(f's_cbranch_vccnz L_slowA{j}')
            e.label(f'L_slowA{j}_back')
            if j % 2 == 0:
                e('s_barrier')
            d = dma('K', j % 2, j // 2 + 2)
            fx = {s: [kread(j + 2, s)] for s in range(8)}
            fx[8] = [d[2]]; fx[9] = [d[3]]
            po = {7: [d[0]], 9: [d[4]], 14: ['s_waitcnt lgkmcnt(8)']}
            if j % 2 == 0 and not OPT('NOPF'):
                srdn, so = ((36, 51), (52, 49), (56, 49), (96, 49))[j // 2]
                fx[10] = [f'buffer_load_dwordx4 v[52:55], v1, s[{srdn}:{srdn+3}], s{so} offen']
            for f in range(4): fx[11 + f] = vread(j + 1, f)
            half(e, qk(SB, NB, QB) + pv(64, PB), exp_half(SA, PA, LA, 0) + exp_half(SA, PA, LA, 1),
                 max16(SB, MX) + [f'v_cmp_lt_f32 vcc, {T}, v{MX}'], 11, fx, po)
            if not OPT('NOCHK'): e(f's_cbranch_vccnz L_slowB{j}')
            e.label(f'L_slowB{j}_back')
    e.out = []
    body(e)
    e.out = []
    n0 = e.nops
    e.label('L_attn_loop')
    e('s_cmp_eq_u32 s48, 7')
    e(f's_cselect_b32 s47, 0x7f800000, s46')
    body(e)
    print('attn loop nops', e.nops - n0)
    e('s_add_u32 s48, s48, 1')
    e('s_add_u32 s49, s49, 1024')
    e('s_add_u32 s51, s51, 1024')
    e('s_cmp_ge_u32 s48, 6')
    e('s_cselect_b32 s49, 0x7fff0000, s49')
    e('s_cmp_ge_u32 s48, 5')
    e('s_cselect_b32 s51, 0x7fff0000, s51')
    e('s_cmp_lt_u32 s48, 8')
    e('s_cbranch_scc1 L_attn_loop')
    e.stamp(3)
    e('s_waitcnt vmcnt(0)')
    e('s_nop 15')
    e(f's_lshl_b32 s25, s20, 18')
    e(f's_lshl_b32 s26, s17, 14')
    e('s_add_u32 s25, s25, s26')
    for L, O in ((LAF, 0), (LB, 64)):
        e(f'''v_mov_b32 v2, v{L}
        v_mov_b32 v3, v{L}
        v_permlane32_swap_b32 v2, v3
        v_add_f32 v2, v2, v3
        v_rcp_f32 v2, v2''')
        for fr in range(8):
            b = 64 + 8 * (fr % 2); d = 80 + 4 * (fr % 4)
            for i in range(8): e(f'v_accvgpr_read_b32 v{b+i}, a{O+8*fr+i}')
            for i in range(8): e(f'v_mul_f32 v{b+i}, v{b+i}, v2')
            for i in range(4): e(f'v_cvt_pk_bf16_f32 v{d+i}, v{b+2*i}, v{b+2*i+1}')
            e(f'buffer_store_dwordx4 {rng(d,4)}, v1, s[12:15], s25 offen offset:{1024*(fr%4)}')
            if fr % 4 == 3: e('s_add_u32 s25, s25, 4096')
    if OPT('STAMP'): e('s_waitcnt vmcnt(0)')
    e.stamp(4)
    e.stamps_out(5, 0)
    tl_out(e, name)
    e('s_endpgm')
    txt = pro + e.text()
    for j in range(8):
        txt += slow('A', f'L_slowA{j}') + slow('B', f'L_slowB{j}')
    txt += f'L_{name}_end:\n  s_endpgm\n'
    return txt, desc(name, 400, 256), (name, 256, 256, 131072)

NV4 = 4
def interleave(a, b):
    out = []; a = list(a); b = list(b)
    while a or b:
        if a: out.append(a.pop(0))
        if b: out.append(b.pop(0))
    return out
```

```python
import os
from emit import Emit, OPT
from k_small import *

def gemm(e, NS, NT, acc, bfrag, rd, wbatch, xload, ring, RING=6, D=4, extra=None, PRE=3, base=0, vm=None, tailw=None, gst=False):
    vm = vm if vm is not None else []
    def put(g, tag):
        for i in g:
            e(i)
            if i.startswith('buffer_'): vm.append(tag)
    have = set(vm)
    PRE = int(os.environ.get('PREW', 2)); PX = int(os.environ.get('PREX', 2))
    for st in range(max(PRE, PX)):
        if st < PRE and ('W', base + st) not in have:
            for g in wbatch(st): put(g, ('W', base + st))
        if xload and st < PX:
            put(xload(st), ('X', st))
    N = NS * 4 * NT
    seq = [(st, s, t) for st in range(NS) for s in range(4) for t in range(NT)]
    def reads(n):
        st, s, t = seq[n]
        if s == 0 and t == 0:
            need = [i for i, tg in enumerate(vm) if tg == ('W', base + st) or tg == ('X', st) and xload]
            later = len(vm) - 1 - max(need)
            e(f's_waitcnt vmcnt({min(later, 63)}) lgkmcnt(0)')
            e('s_barrier')
            if gst and base == 0: e.stamp(st + 1, True)
        r = ring + 4 * (n % RING)
        for h in range(2):
            va, off = rd(st, s, t, h)
            e(f'ds_read_b64_tr_b16 v[{r+2*h}:{r+2*h+1}], v{va} offset:{off}')
    for n in range(D):
        reads(n)
    pendb = []
    extra = list(extra or [])
    nx = len(extra); donex = 0
    for n in range(N):
        st, s, t = seq[n]
        if s == 0 and t == 0:
            if st + PRE < NS:
                pendb = [(g, ('W', base + st + PRE)) for g in wbatch(st + PRE)]
            elif tailw:
                pendb = [(g, ('W', base + st + PRE)) for g in tailw(st + PRE - NS)]
            if xload and st + PX < NS:
                xs = xload(st + PX)
                pendb = [([i], ('X', st + PX)) for i in xs[:3]] + [(xs[3:], ('X', st + PX))] + pendb
        r = ring + 4 * (n % RING)
        ks = st * 4 + s
        c = '0' if ks == 0 else acc(t)
        e(f'v_mfma_f32_32x32x16_bf16 {acc(t)}, v[{r}:{r+3}], {bfrag(ks)}, {c}')
        if n + D < N and seq[n + D][1] == 0 and seq[n + D][2] == 0:
            while pendb: put(*pendb.pop(0))
        if n + D < N:
            reads(n + D)
        if pendb and n % 2 == 0:
            put(*pendb.pop(0))
        while extra and donex < nx * (n + 1) / (N - 2 * NT):
            i = extra.pop(0); donex += 1
            put([i], ('S', 0))
    while pendb: put(*pendb.pop(0))
    while extra: put([extra.pop(0)], ('S', 0))
    return vm

def wave_id(e, sreg):
    e(f'v_lshrrev_b32 v1, 6, v0')
    e('s_nop 0')
    e(f'v_readfirstlane_b32 s{sreg}, v1')
    e('v_and_b32 v0, 63, v0')
    e('s_nop 3')

def tr_lane_addr(e, dst, rowb, ds, t1, t2):
    e(f'''v_lshrrev_b32 v{t1}, 5, v0
    v_lshlrev_b32 v{t1}, 3, v{t1}
    v_bfe_u32 v{t2}, v0, 2, 2
    v_add_u32 v{t1}, v{t1}, v{t2}
    v_mul_u32_u24 v{dst}, {rowb}, v{t1}
    v_bfe_u32 v{t2}, v0, 4, 1
    v_mul_u32_u24 v{t2}, {ds}, v{t2}
    v_add_u32 v{dst}, v{dst}, v{t2}
    v_and_b32 v{t2}, 1, v0
    v_lshl_add_u32 v{dst}, v{t2}, 4, v{dst}
    v_bfe_u32 v{t2}, v0, 1, 1
    v_lshl_add_u32 v{dst}, v{t2}, 3, v{dst}''')

def divmod_const(e, q, r, x, d, t):
    magic = (65536 + d - 1) // d
    assert all((x_ * magic) >> 16 == x_ // d for x_ in range(2304))
    e(f'''v_mul_u32_u24 v{q}, {magic}, v{x}
    v_lshrrev_b32 v{q}, 16, v{q}
    v_mul_u32_u24 v{t}, {d}, v{q}
    v_sub_u32 v{r}, v{x}, v{t}''')

def k_proj(down):
    e = Emit(); name = 'k6_down_kernel' if down else 'k3_oproj_kernel'
    KS = 36 if down else 32
    NFX = 288 if down else 256
    NS = KS // 4
    STG = 64 * 576
    head(e, name, 256)
    srd(e, 4, A_WD if down else A_WO, KS * 16 * 8 * 1152)
    srd(e, 8, A_WS, 64 * NFX * 1024, ACT if down else OF)
    srd(e, 12, A_WS, 8 * FR, PART)
    wave_id(e, 16)
    e.stamp(0)
    if OPT('GST3'): e.stamp(0, True)
    e(f'''s_and_b32 s17, s2, 7
    s_bfe_u32 s18, s2, 0x10003
    s_lshr_b32 s19, s2, 4
    s_lshl_b32 s20, s19, 2
    s_add_u32 s20, s20, s16
    s_mul_i32 s21, s20, {NFX*1024}
    s_mul_i32 s22, s17, {KS*1024}
    s_add_u32 s21, s21, s22
    s_mul_i32 s22, s17, {KS*16*1152}
    s_mul_i32 s23, s18, 576
    s_add_u32 s22, s22, s23
    s_mul_i32 s24, s16, 9216
    s_mul_i32 s25, s17, {FR}
    s_mul_i32 s26, s20, 36864
    s_add_u32 s25, s25, s26
    s_mul_i32 s26, s18, 18432
    s_add_u32 s25, s25, s26
    v_lshlrev_b32 v1, 4, v0''')
    for j in range(9):
        e(f's_mul_i32 s26, s16, 576')
        e(f's_add_u32 s26, s26, {64*j}')
        e(f'v_add_u32 v2, s26, v0')
        divmod_const(e, 3, 4, 2, 36, 5)
        e(f'v_mul_u32_u24 v{10+j}, 1152, v3')
        e(f'v_lshl_add_u32 v{10+j}, v4, 4, v{10+j}')
    tr_lane_addr(e, 20, 576, 32, 2, 3)
    for q in range(1, 4):
        e(f'v_add_u32 v{20+q}, {q*STG}, v20')
    def xl(st):
        return [f'buffer_load_dwordx4 a[{16*st+4*j}:{16*st+4*j+3}], v1, s[8:11], s21 offen offset:{1024*j}' for j in range(4)] + ['s_add_u32 s21, s21, 4096']
    def batch(st):
        b = []
        for j in range(9):
            b.append([f's_add_u32 m0, s24, {(st%4)*STG + 1024*j}', 's_nop 0',
                      f'buffer_load_dwordx4 v{10+j}, s[4:7], s22 offen lds'])
        b[-1].append(f's_add_u32 s22, s22, {64*1152}')
        return b
    def rd(st, s, t, h):
        return (20 + st % 4, (16 * s + 4 * h) * 576 + 64 * t)
    acc = lambda t: f'v[{64+16*t}:{64+16*t+15}]'
    gemm(e, NS, 9, acc, lambda ks: f'a[{4*ks}:{4*ks+3}]', rd, batch, xl, 24, gst=OPT('GST3') and not down)
    e.stamp(1)
    for t in range(9):
        for a in range(2):
            b = 64 + 16 * t + 8 * a
            d = 24 + 4 * ((2 * t + a) % 4)
            for i in range(4):
                e(f'v_cvt_pk_bf16_f32 v{d+i}, v{b+2*i}, v{b+2*i+1}')
            if (2 * t + a) % 4 == 0 and t:
                e('s_add_u32 s25, s25, 4096')
            e(f'buffer_store_dwordx4 v[{d}:{d+3}], v1, s[12:15], s25 offen offset:{1024*((2*t+a)%4)}')
    if OPT('STAMP') or OPT('GST3'): e('s_waitcnt vmcnt(0)')
    e.stamp(2)
    e.stamps_out(3, 8 if down else 5)
    if OPT('GST3') and not down:
        e.stamp(9, True)
        e.stamps_out(10, 0, True)
    tail(e, name)
    return e.text(), desc(name, 400, 256), (name, 256, 256, 4 * STG)

def silu_mul(t, base, dst, tmp):
    L = []
    for i in range(0, 8, 2):
        P = [(base + i + k, base + 8 + i + k, tmp + (i + k) % 4) for k in range(2)]
        L += [f'v_mul_f32 v{x}, 0xbfb8aa3b, v{g}' for g, u, x in P]
        L += [f'v_exp_f32 v{x}, v{x}' for g, u, x in P]
        L += [f'v_mul_f32 v{u}, v{g}, v{u}' for g, u, x in P]
        L += [f'v_add_f32 v{x}, 1.0, v{x}' for g, u, x in P]
        L += [f'v_rcp_f32 v{x}, v{x}' for g, u, x in P]
        L += [f'v_mul_f32 v{P[0][0]}, v{P[0][1]}, v{P[0][2]}', f'v_mul_f32 v{P[1][0]}, v{P[1][1]}, v{P[1][2]}']
        L.append(f'v_cvt_pk_bf16_f32 v{dst+i//2}, v{P[0][0]}, v{P[1][0]}')
    return L

def k_gateup():
    e = Emit(); name = 'k5_gateup_kernel'
    REG = 64 * 288 + 128
    STG = 2 * 64 * 288 + 256
    head(e, name, 256)
    wave_id(e, 16)
    e('s_cmp_ge_u32 s16, 2')
    e('s_cbranch_scc1 L_k5_up')
    srd(e, 4, A_WG, 576 * 9216)
    e('s_branch L_k5_j')
    e.label('L_k5_up')
    srd(e, 4, A_WU, 576 * 9216)
    e.label('L_k5_j')
    srd(e, 8, A_WS, FR, H2)
    srd(e, 12, A_WS, 64 * 288 * 1024, ACT)
    e(f'''s_and_b32 s17, s2, 7
    s_bfe_u32 s18, s2, 0x10003
    s_lshl_b32 s17, s17, 1
    s_add_u32 s18, s18, s17
    s_lshr_b32 s19, s2, 4
    s_lshl_b32 s20, s19, 2
    s_add_u32 s20, s20, s16
    s_mul_i32 s21, s20, 36864
    s_mul_i32 s22, s18, 576
    s_and_b32 s26, s16, 1
    s_mul_i32 s24, s26, 9216
    s_lshr_b32 s27, s16, 1
    s_mul_i32 s27, s27, {REG}
    s_add_u32 s24, s24, s27
    s_mul_i32 s25, s20, {288*1024}
    s_mul_i32 s27, s18, {18*1024}
    s_add_u32 s25, s25, s27
    v_lshlrev_b32 v1, 4, v0''')
    for j in range(9):
        e(f's_mul_i32 s27, s26, 576')
        e(f's_add_u32 s27, s27, {64*j}')
        e(f'v_add_u32 v2, s27, v0')
        divmod_const(e, 3, 4, 2, 18, 5)
        e(f'v_mul_u32_u24 v{10+j}, 9216, v3')
        e(f'v_lshl_add_u32 v{10+j}, v4, 4, v{10+j}')
    tr_lane_addr(e, 20, 288, REG, 2, 3)
    e(f'v_add_u32 v21, {2*STG}, v20')
    def xl(st):
        return [f'buffer_load_dwordx4 a[{16*st+4*j}:{16*st+4*j+3}], v1, s[8:11], s21 offen offset:{1024*j}' for j in range(4)] + ['s_add_u32 s21, s21, 4096']
    def mk_batch(cb):
        def batch(st):
            b = []
            for j in range(9):
                b.append([f's_add_u32 m0, s24, {((st+9*cb)%4)*STG + 1024*j}', 's_nop 0',
                          f'buffer_load_dwordx4 v{10+j}, s[4:7], s22 offen lds'])
            b[-1].append(f's_add_u32 s22, s22, {64*9216}')
            if st == 8:
                b[-1].append(f's_sub_u32 s22, s22, {576*9216 - 288}')
            return b
        return batch
    def mk_rd(cb):
        def rd(st, s, t, h):
            q = (st + 9 * cb) % 4
            off = (q % 2) * STG + (16 * s + 4 * h) * 288 + 32 * t
            return (20 + q // 2, off)
        return rd
    bf = lambda ks: f'a[{4*ks}:{4*ks+3}]'
    def epi(blk):
        L = []
        for t in range(9):
            d = 48 + 4 * (t % 2)
            base = 64 + 16 * t
            if blk == 1:
                if t < 7:
                    base = 64 + 16 * (t % 2)
                    L += [f'v_accvgpr_read_b32 v{base+i}, a{144+16*t+i}' for i in range(16)]
                else:
                    base = 208 + 16 * (t - 7)
            L += silu_mul(t, base, d, 56)
            L.append(f'buffer_store_dwordx4 v[{d}:{d+3}], v1, s[12:15], s25 offen offset:{1024*(t%4)}')
            if t % 4 == 3 or t == 8:
                L.append(f's_add_u32 s25, s25, {4096 if t < 8 else 1024}')
        return L
    acc0 = lambda t: f'v[{64+16*t}:{64+16*t+15}]'
    acc1 = lambda t: f'a[{144+16*t}:{144+16*t+15}]' if t < 7 else f'v[{208+16*(t-7)}:{208+16*(t-7)+15}]'
    e.stamp(0)
    vm = gemm(e, 9, 9, acc0, bf, mk_rd(0), mk_batch(0), xl, 24, tailw=mk_batch(1))
    e.stamp(1)
    e.stamp(2)
    gemm(e, 9, 9, acc1, bf, mk_rd(1), mk_batch(1), None, 24, base=9, vm=vm, extra=epi(0))
    e.stamp(3)
    for i in epi(1): e(i)
    if OPT('STAMP'): e('s_waitcnt vmcnt(0)')
    e.stamp(4)
    e.stamps_out(5, 11)
    tail(e, name)
    return e.text(), desc(name, 512, 256), (name, 256, 256, 4 * STG)
```

```python
from emit import Emit, OPT

MOD, H1, X1, H2, OF, PART, ACT = 0, 0x100000, 0x400000, 0x700000, 0x1000000, 0x2000000, 0x3400000
FR = 64 * 36 * 1024
A_X, A_K, A_V, A_WQ, A_WO, A_WG, A_WU, A_WD, A_C, A_WM, A_OUT, A_WS = 0, 8, 16, 24, 32, 48, 56, 64, 72, 80, 88, 104

def srd(e, r, arg, size, off=0, tmp=4):
    e(f's_load_dwordx2 s[{r}:{r+1}], s[0:1], {arg}')
    e('s_waitcnt lgkmcnt(0)')
    if off:
        e(f's_add_u32 s{r}, s{r}, {off}')
        e(f's_addc_u32 s{r+1}, s{r+1}, 0')
    e(f's_mov_b32 s{r+2}, {size}')
    e(f's_mov_b32 s{r+3}, 0x00020000')

def head(e, name, nwg):
    e.raw(f'.globl {name}\n.p2align 8\n.type {name},@function\n{name}:')
    e(f's_cmp_ge_u32 s2, {nwg}')
    e(f's_cbranch_scc1 L_{name}_end')
    if OPT('TL'):
        e('s_memrealtime s[90:91]')
        e('s_waitcnt lgkmcnt(0)')

def tl_out(e, name):
    if OPT('TL'):
        k = int(name[1])
        e(f'''s_memrealtime s[92:93]
        s_load_dwordx2 s[80:81], s[0:1], 96
        s_waitcnt lgkmcnt(0)
        s_mov_b32 s82, 256
        s_mov_b32 s83, 0x20000
        s_cmp_lg_u32 s2, 17
        s_cbranch_scc1 L_notl{k}
        v_mov_b32 v2, s90
        v_mov_b32 v3, s92
        v_mov_b32 v4, {8*k}
        buffer_store_dwordx2 v[2:3], v4, s[80:83], 0 offen
        s_waitcnt vmcnt(0)''')
        e.label(f'L_notl{k}')

def tail(e, name):
    tl_out(e, name)
    e.label(f'L_{name}_end')
    e('s_endpgm')

def desc(name, vgpr, accum, sgpr=102):
    return f'''.p2align 6
.amdhsa_kernel {name}
  .amdhsa_next_free_vgpr {vgpr}
  .amdhsa_next_free_sgpr {sgpr}
  .amdhsa_accum_offset {accum}
  .amdhsa_group_segment_fixed_size 0
  .amdhsa_kernarg_size 112
  .amdhsa_user_sgpr_count 2
  .amdhsa_user_sgpr_kernarg_segment_ptr 1
  .amdhsa_system_sgpr_workgroup_id_x 1
.end_amdhsa_kernel
'''

def unpack(e, dst, src, n, smask):
    for i in range(n):
        e(f'v_lshlrev_b32 v{dst+2*i}, 16, v{src+i}')
        e(f'v_and_b32 v{dst+2*i+1}, {smask}, v{src+i}')

NMOD = 108
QSCALE = 0x3e0293ee

def mod_part(e):
    srd(e, 4, A_WM, 576 * 3456 * 2)
    srd(e, 8, A_C, 576 * 2)
    srd(e, 12, A_WS, 3456 * 4, MOD)
    srd(e, 20, 96, 256)
    e('''s_mov_b32 s16, 0xffff0000
    s_lshl_b32 s17, s2, 6
    v_and_b32 v1, 3, v0
    v_lshrrev_b32 v2, 2, v0
    v_mul_u32_u24 v4, 27648, v2
    v_lshl_add_u32 v4, v1, 4, v4
    v_lshlrev_b32 v5, 3, v2''')
    e('buffer_load_dwordx2 v[8:9], v5, s[8:11], 0 offen')
    for j in range(4):
        e(f'buffer_load_dwordx4 v[{20+4*j}:{23+4*j}], v4, s[4:7], s17 offen')
        if j < 3:
            e('v_add_u32 v4, 6912, v4')
    e('s_waitcnt vmcnt(4)')
    unpack(e, 10, 8, 2, 's16')
    for j in range(4):
        e(f'v_mul_f32 v6, 0xbfb8aa3b, v{10+j}')
        e('v_exp_f32 v6, v6')
        e('v_add_f32 v6, 1.0, v6')
        e('v_rcp_f32 v6, v6')
        e(f'v_mul_f32 v6, v{10+j}, v6')
        e('v_cvt_pk_bf16_f32 v6, v6, v6')
        e(f'v_lshlrev_b32 v{10+j}, 16, v6')
    for i in range(8):
        e(f'v_mov_b32 v{60+i}, 0')
    for j in range(4):
        e(f's_waitcnt vmcnt({3-j})')
        unpack(e, 70, 20 + 4 * j, 4, 's16')
        for i in range(8):
            e(f'v_fmac_f32 v{60+i}, v{70+i}, v{10+j}')
    e('''v_lshlrev_b32 v6, 7, v2
    v_lshl_add_u32 v6, v1, 5, v6
    ds_write_b128 v6, v[60:63]
    ds_write_b128 v6, v[64:67] offset:16
    s_waitcnt lgkmcnt(0)
    s_barrier
    v_and_b32 v1, 31, v0
    v_lshrrev_b32 v2, 5, v0
    v_lshlrev_b32 v6, 10, v2
    v_lshl_add_u32 v6, v1, 2, v6''')
    for i in range(8):
        e(f'ds_read_b32 v{20+i}, v6 offset:{128*i}')
    for i in range(1, 8):
        e(f'v_add_f32 v20, v20, v{20+i}')
    e('''v_lshlrev_b32 v6, 2, v0
    ds_write_b32 v6, v20 offset:18432
    s_waitcnt lgkmcnt(0)
    s_barrier
    v_readfirstlane_b32 s18, v0
    s_nop 3
    s_cmp_ge_u32 s18, 64
    s_cbranch_scc1 L_mod_done
    v_lshlrev_b32 v6, 2, v1''')
    for i in range(18):
        e(f'ds_read_b32 v{20+i}, v6 offset:{18432+128*i}')
    for i in range(1, 18):
        e(f'v_add_f32 v20, v20, v{20+i}')
    e('''v_cvt_pk_bf16_f32 v20, v20, v20
    v_lshlrev_b32 v20, 16, v20
    s_lshl_b32 s17, s2, 7
    v_cmp_gt_u32 vcc, 32, v0
    s_and_saveexec_b64 s[18:19], vcc
    buffer_store_dword v20, v6, s[12:15], s17 offen sc0 sc1
    s_waitcnt vmcnt(0)
    v_cmp_eq_u32 vcc, 0, v0
    s_and_b64 exec, exec, vcc
    v_mov_b32 v7, 1
    v_mov_b32 v6, 0
    buffer_atomic_add v7, v6, s[20:23], 0 offen sc1
    s_waitcnt vmcnt(0)''')
    e.label('L_mod_done')
    e('s_endpgm')

def wait_mod(e):
    srd(e, 36, 96, 256)
    e('''v_readfirstlane_b32 s30, v0
    s_nop 3
    s_cmp_ge_u32 s30, 64
    s_cbranch_scc1 L_poll_done
    s_mov_b32 s31, 0
    v_mov_b32 v14, 0''')
    e.label('L_poll')
    e(f'''buffer_load_dword v15, v14, s[36:39], 0 offen sc0 sc1
    s_waitcnt vmcnt(0)
    v_readfirstlane_b32 s30, v15
    s_add_u32 s31, s31, 1
    s_cmp_ge_u32 s30, {NMOD}
    s_cbranch_scc1 L_poll_done
    s_sleep 2
    s_cmp_lt_u32 s31, 0x400000
    s_cbranch_scc1 L_poll''')
    e.label('L_poll_done')
    e('s_barrier')

def row_reduce(e, v, ldsoff, t1, t2, vwaddr, vraddr):
    e(f'v_add_f32_dpp v{v}, v{v}, v{v} row_ror:8 row_mask:0xf bank_mask:0xf')
    for sw in ('v_permlane16_swap_b32', 'v_permlane32_swap_b32'):
        e(f'v_mov_b32 v{t1}, v{v}')
        e(f'v_mov_b32 v{t2}, v{v}')
        e(f'{sw} v{t1}, v{t2}')
        e(f'v_add_f32 v{v}, v{t1}, v{t2}')
    e(f'ds_write_b32 v{vwaddr}, v{v} offset:{ldsoff}')
    e('s_waitcnt lgkmcnt(0)')
    e('s_barrier')
    for w in range(9):
        e(f'ds_read_b32 v{70+w}, v{vraddr} offset:{ldsoff+w*256}')
    e(f'v_add_f32 v{v}, v70, v71')
    for w in range(2, 9):
        e(f'v_add_f32 v{v}, v{v}, v{70+w}')

def k_row(mode):
    e = Emit(); name = {1: 'k1_ln_kernel', 2: 'k4_red_kernel', 3: 'k7_red_kernel'}[mode]
    head(e, name, 256 + (NMOD if mode == 1 else 0))
    if mode == 1:
        e(f's_cmp_ge_u32 s2, {NMOD}')
        e('s_cbranch_scc1 L_ln1')
        mod_part(e)
        e.label('L_ln1')
        e(f's_sub_u32 s2, s2, {NMOD}')
    if mode == 3:
        srd(e, 4, A_WS, FR, X1)
    else:
        srd(e, 4, A_X, FR)
    srd(e, 8, A_WS, 3456 * 4, MOD)
    srd(e, 12, A_WS, 8 * FR, PART)
    if mode == 3:
        srd(e, 16, A_OUT, FR)
    else:
        srd(e, 16, A_WS, FR, H1 if mode == 1 else H2)
    srd(e, 20, A_WS, FR, X1)
    e('''s_mov_b32 s24, 0xffff0000
    v_and_b32 v1, 7, v0
    v_bfe_u32 v2, v0, 3, 1
    v_lshrrev_b32 v3, 4, v0
    s_lshl_b32 s25, s2, 3
    v_add_u32 v4, s25, v1
    v_mul_u32_u24 v4, 1152, v4
    v_lshl_add_u32 v4, v3, 5, v4
    v_lshl_add_u32 v4, v2, 4, v4
    s_lshr_b32 s26, s2, 2
    s_mul_i32 s26, s26, 36864
    s_and_b32 s27, s2, 3
    s_lshl_b32 s27, s27, 7
    s_add_u32 s26, s26, s27
    v_lshlrev_b32 v5, 10, v3
    v_lshl_add_u32 v5, v2, 9, v5
    v_lshl_add_u32 v5, v1, 4, v5
    v_add_u32 v5, s26, v5
    v_lshlrev_b32 v6, 6, v3
    v_lshl_add_u32 v6, v2, 5, v6
    v_lshlrev_b32 v7, 2, v0
    v_lshlrev_b32 v8, 2, v1''')
    e('buffer_load_dwordx4 v[10:13], v4, s[4:7], 0 offen')
    def modload(idx, dst, fl=''):
        e(f's_mov_b32 s28, {idx*2304}')
        e(f'buffer_load_dwordx4 v[{dst}:{dst+3}], v6, s[8:11], s28 offen{fl}')
        e(f'buffer_load_dwordx4 v[{dst+4}:{dst+7}], v6, s[8:11], s28 offen offset:16{fl}')
    if mode >= 2:
        for p in range(8):
            e(f's_mov_b32 s28, {p*FR}')
            e(f'buffer_load_dwordx4 v[{80+4*p}:{83+4*p}], v5, s[12:15], s28 offen')
        modload(2 if mode == 2 else 5, 40)
    if mode == 2:
        modload(3, 48)
        modload(4, 56)
    if mode == 1 and not OPT('NOPF'):
        srd(e, 32, A_WQ, 576 * 8192)
        e('s_mul_i32 s29, s2, 18432')
        e('v_lshlrev_b32 v9, 4, v0')
        e('buffer_load_dwordx4 v[100:103], v9, s[32:35], s29 offen')
        e('s_add_u32 s29, s29, 9216')
        e('buffer_load_dwordx4 v[104:107], v9, s[32:35], s29 offen')
    e('s_waitcnt vmcnt(%d)' % (2 if mode == 1 and not OPT('NOPF') else 0))
    unpack(e, 20, 10, 4, 's24')
    if mode >= 2:
        unpack(e, 30, 80, 4, 's24')
        for p in range(1, 8):
            unpack(e, 64, 80 + 4 * p, 4, 's24')
            for i in range(8):
                e(f'v_add_f32 v{30+i}, v{30+i}, v{64+i}')
        for i in range(4):
            e(f'v_cvt_pk_bf16_f32 v{64+i}, v{30+2*i}, v{31+2*i}')
        unpack(e, 30, 64, 4, 's24')
        for i in range(8):
            e(f'v_mul_f32 v{30+i}, v{30+i}, v{40+i}')
        for i in range(4):
            e(f'v_cvt_pk_bf16_f32 v{64+i}, v{30+2*i}, v{31+2*i}')
        unpack(e, 30, 64, 4, 's24')
        for i in range(8):
            e(f'v_add_f32 v{20+i}, v{20+i}, v{30+i}')
        for i in range(4):
            e(f'v_cvt_pk_bf16_f32 v{64+i}, v{20+2*i}, v{21+2*i}')
        if mode == 3:
            e('buffer_store_dwordx4 v[64:67], v4, s[16:19], 0 offen')
        else:
            e('buffer_store_dwordx4 v[64:67], v4, s[20:23], 0 offen')
            unpack(e, 20, 64, 4, 's24')
    if mode <= 2:
        e('v_add_f32 v9, v20, v21')
        for i in range(2, 8):
            e(f'v_add_f32 v9, v9, v{20+i}')
        row_reduce(e, 9, 0, 14, 15, 7, 8)
        e('v_mul_f32 v9, 0x3ae38e39, v9')
        for i in range(8):
            e(f'v_sub_f32 v{20+i}, v{20+i}, v9')
        e('v_mul_f32 v9, v20, v20')
        for i in range(1, 8):
            e(f'v_fmac_f32 v9, v{20+i}, v{20+i}')
        row_reduce(e, 9, 4096, 14, 15, 7, 8)
        e('v_mul_f32 v9, 0x3ae38e39, v9')
        e('v_add_f32 v9, 0x3727c5ac, v9')
        e('v_rsq_f32 v9, v9')
        if mode == 1:
            wait_mod(e)
            modload(0, 48, ' sc0 sc1')
            modload(1, 56, ' sc0 sc1')
            e('s_waitcnt vmcnt(0)')
        for i in range(8):
            e(f'v_mul_f32 v{20+i}, v{20+i}, v9')
            e(f'v_add_f32 v{56+i}, 1.0, v{56+i}')
        for i in range(8):
            e(f'v_fma_f32 v{20+i}, v{20+i}, v{56+i}, v{48+i}')
        if mode == 1:
            for i in range(8):
                e(f'v_mul_f32 v{20+i}, {QSCALE}, v{20+i}')
        for i in range(4):
            e(f'v_cvt_pk_bf16_f32 v{68+i}, v{20+2*i}, v{21+2*i}')
        e('buffer_store_dwordx4 v[68:71], v5, s[16:19], 0 offen')
    tail(e, name)
    return e.text(), desc(name, 112, 112), ((name, 256 + NMOD, 576, 24576) if mode == 1 else (name, 256, 576, 8192))
```

```python
import os
from emit import Emit, OPT
from k_small import *
from k_gemm import gemm, wave_id, tr_lane_addr

SA, SB, NA, NB, KF, VF, PA, PB = 64, 80, 96, 112, 128, 160, 28, 36
LA, LB, MX, LAF = 44, 45, 46, 48
QA, QB = 192, 224
KA, VA = 10, 18
DK0, DK1, DV = 22, 23, 24
THR = 0x42700000
rng = lambda b, n: f'v[{b}:{b+n-1}]'
arng = lambda b, n: f'a[{b}:{b+n-1}]'
MF = 'v_mfma_f32_32x32x16_bf16'

def exp_half(S, P, L, half):
    b = S + 8 * half; p = P + 4 * half
    E = lambda i: f'v_exp_f32 v{b+i}, v{b+i}'
    A = lambda i: f'v_add_f32 v{L}, v{L}, v{b+i}'
    C = lambda i: f'v_cvt_pk_bf16_f32 v{p+i}, v{b+2*i}, v{b+2*i+1}'
    return [E(0), E(1), A(0), E(2), A(1), E(3), A(2), C(0), E(4), A(3), E(5), A(4), C(1), E(6), A(5), E(7), A(6), C(2), A(7), C(3)]

def max16(S, m):
    L = [f'v_max3_f32 v{m}, v{S}, v{S+1}, v{S+2}']
    for i in range(3, 15, 2):
        L.append(f'v_max3_f32 v{m}, v{m}, v{S+i}, v{S+i+1}')
    L.append(f'v_max_f32 v{m}, v{m}, v{S+15}')
    return L

def kslot(j): return (((j - 2) // 2) % 4) * 16384 + (j % 2) * 8192
def vslot(j): return (((j - 1) // 2) % 4) * 16384 + ((j - 1) % 2) * 8192
def kread(j, s): return f'ds_read_b128 {rng(KF+4*s, 4)}, v{KA+s} offset:{kslot(j)}'
def vread(j, f):
    u, t = f >> 2, f & 3
    return [f'ds_read_b64_tr_b16 {rng(VF+4*f+2*h, 2)}, v{VA+t} offset:{vslot(j) + (16*u+4*h)*256}' for h in range(2)]
def dma(kind, tau, stage):
    q = stage % 4
    if kind == 'K':
        s = 40 + tau
        return [f's_add_u32 m0, s24, {q*16384 + tau*8192}', 's_nop 0',
                f'buffer_load_dwordx4 v{DK0}, s[28:31], s{s} offen lds',
                f'buffer_load_dwordx4 v{DK1}, s[28:31], s{s} offen offset:1024 lds', f's_add_u32 s{s}, s{s}, 16384']
    s = 42 + tau
    return [f's_add_u32 m0, s24, {65536 + q*16384 + tau*8192}', 's_nop 0',
            f'buffer_load_dwordx4 v{DV}, s[32:35], s{s} offen lds',
            f'buffer_load_dwordx4 v{DV}, s[32:35], s{s} offen offset:1024 lds', f's_add_u32 s{s}, s{s}, 16384']

CD = int(os.environ.get('CD', 24))
def cost(i):
    if i.startswith('v_exp'): return 8
    if i.startswith('buffer_'): return CD
    return 4

def half(e, mfmas, main, mx, mx0, fixed, post):
    n = len(mfmas)
    fc = [sum(cost(i) for i in fixed.get(g, []) + post.get(g, [])) for g in range(n)]
    cap = [max(0, 24 - c) for c in fc]
    LG = n - 1 - int(os.environ.get('EMPTY', 1))
    for g in range(LG + 1, n): cap[g] = 0
    W = sum(cost(i) for i in main + mx)
    tot = sum(cap); done = 0; cum = 0
    main = list(main); mx = list(mx); tog = 0
    MXR = int(os.environ.get('MXR', 100))
    for g in range(n):
        e(mfmas[g])
        for i in fixed.get(g, []): e(i)
        cum += cap[g]
        while main or (mx and g >= mx0):
            pick = mx if (mx and g >= mx0 and (not main or tog % MXR != MXR - 1)) else main or mx
            tog += 1
            c = cost(pick[0])
            if g < LG and done + c / 2 > W * cum / tot: break
            e(pick.pop(0)); done += c
        for i in post.get(g, []): e(i)

def group(e, mfmas, fill, fixed=None):
    n = len(mfmas); fixed = fixed or {}
    cost = lambda i: 8 if i.startswith('v_exp') else 4
    tot = sum(cost(i) for i in fill) + sum(cost(i) for v in fixed.values() for i in v)
    done = 0; fill = list(fill)
    for g, m in enumerate(mfmas):
        e(m)
        for i in fixed.get(g, []):
            e(i); done += cost(i)
        while fill and (done + cost(fill[0]) / 2 <= tot * (g + 1) / n or g == n - 1):
            i = fill.pop(0); e(i); done += cost(i)

def slow(X, lbl, first=False):
    S, N, L, O = (SA, NA, LA, 0) if X == 'A' else (SB, NB, LB, 64)
    e = Emit()
    e.label(lbl)
    e('s_nop 15')
    e(f'v_mov_b32 v2, v{MX}')
    e(f'v_mov_b32 v3, v{MX}')
    e('v_permlane32_swap_b32 v2, v3')
    e('v_max_f32 v2, v2, v3')
    e('v_max_f32 v2, 0, v2')
    e('v_sub_f32 v3, 0, v2')
    e('v_exp_f32 v3, v3')
    for i in range(16):
        e(f'v_sub_f32 v{S+i}, v{S+i}, v2')
        e(f'v_sub_f32 v{N+i}, v{N+i}, v2')
    e(f'v_mul_f32 v{L}, v{L}, v3')
    for i in range(0, 64, 4):
        for k in range(4): e(f'v_accvgpr_read_b32 v{4+k}, a{O+i+k}')
        for k in range(4): e(f'v_mul_f32 v{4+k}, v{4+k}, v3')
        for k in range(4): e(f'v_accvgpr_write_b32 a{O+i+k}, v{4+k}')
    e('s_nop 3')
    e(f's_branch {lbl}_back')
    return e.text()

def k_attn():
    e = Emit(); name = 'k2_attn_kernel'
    head(e, name, 256)
    srd(e, 4, A_WQ, 576 * 8192)
    srd(e, 8, A_WS, FR, H1)
    srd(e, 12, A_WS, 64 * 256 * 1024, OF)
    srd(e, 28, A_K, 524288)
    srd(e, 32, A_V, 524288)
    srd(e, 36, A_WO, 4096 * 1152)
    srd(e, 52, A_WG, 576 * 9216)
    srd(e, 56, A_WU, 576 * 9216)
    srd(e, 96, A_WD, 4608 * 1152)
    wave_id(e, 16)
    e.stamp(0)
    e(f'''s_and_b32 s17, s2, 7
    s_lshl_b32 s17, s17, 1
    s_bfe_u32 s18, s2, 0x10003
    s_add_u32 s17, s17, s18
    s_lshr_b32 s18, s2, 4
    s_lshl_b32 s20, s18, 2
    s_add_u32 s20, s20, s16
    s_mul_i32 s21, s20, 36864
    s_lshl_b32 s22, s17, 9
    s_lshl_b32 s24, s16, 13
    s_lshl_b32 s26, s17, 19
    s_add_u32 s28, s28, s26
    s_addc_u32 s29, s29, 0
    s_add_u32 s32, s32, s26
    s_addc_u32 s33, s33, 0
    v_lshlrev_b32 v1, 4, v0''')
    for j in range(8):
        e(f'''s_lshl_b32 s26, s16, 4
        s_add_u32 s26, s26, {2*j}
        v_lshrrev_b32 v2, 5, v0
        v_add_u32 v2, s26, v2
        v_and_b32 v3, 3, v2
        v_lshlrev_b32 v3, 2, v3
        v_and_b32 v4, 31, v0
        v_xor_b32 v3, v3, v4
        v_lshlrev_b32 v2, 13, v2
        v_lshl_add_u32 v{10+j}, v3, 4, v2''')
    tr_lane_addr(e, 9, 512, 32, 2, 3)
    e('v_bfe_u32 v2, v0, 2, 2')
    for t in range(4):
        e(f'v_xor_b32 v3, {t}, v2')
        e(f'v_lshl_add_u32 v{20+t}, v3, 6, v9')
        e(f'v_add_u32 v{24+t}, 0x10000, v{20+t}')
    def xl(st):
        return [f'buffer_load_dwordx4 a[{16*st+4*j}:{16*st+4*j+3}], v1, s[8:11], s21 offen offset:{1024*j}' for j in range(4)] + ['s_add_u32 s21, s21, 4096']
    def batch(st):
        b = []
        for j in range(8):
            b.append([f's_add_u32 m0, s24, {(st%4)*32768 + 1024*j}', 's_nop 0',
                      f'buffer_load_dwordx4 v{10+j}, s[4:7], s22 offen lds'])
        b[-1].append(f's_add_u32 s22, s22, {64*8192}')
        return b
    def rd(st, s, t, h):
        q = st % 4
        return (20 + 4 * (q // 2) + (t & 3), (q % 2) * 32768 + (16 * s + 4 * h) * 512 + (t >> 2) * 256)
    gemm(e, 9, 8, lambda t: rng(64 + 16 * t, 16), lambda ks: arng(4 * ks, 4), rd, batch, xl, 28,
         epi=lambda t: [f'v_cvt_pk_bf16_f32 v{QA+8*t+i}, v{64+16*t+2*i}, v{64+16*t+2*i+1}' for i in range(8)])
    e('s_barrier')
    e.stamp(1)
    e(f'''s_lshl_b32 s24, s16, 11
    s_mov_b32 s40, 0
    s_mov_b32 s41, 8192
    s_mov_b32 s42, 8192
    s_mov_b32 s43, 0
    s_lshr_b32 s26, s16, 1
    s_lshl_b32 s26, s26, 4
    s_and_b32 s27, s16, 1
    s_lshl_b32 s25, s27, 2
    s_add_u32 s26, s26, s25
    s_lshl_b32 s27, s27, 3
    v_lshrrev_b32 v2, 4, v0
    v_and_b32 v3, 15, v0
    v_add_u32 v4, s26, v2
    v_add_u32 v5, s27, v2
    v_xor_b32 v6, v5, v3
    v_lshlrev_b32 v6, 4, v6
    v_lshl_add_u32 v{DK0}, v4, 8, v6
    v_add_u32 v4, 8, v4
    v_add_u32 v5, 4, v5
    v_xor_b32 v6, v5, v3
    v_lshlrev_b32 v6, 4, v6
    v_lshl_add_u32 v6, v4, 8, v6
    v_subrev_u32 v{DK1}, 1024, v6
    s_lshl_b32 s27, s16, 3
    v_add_u32 v4, s27, v2
    v_lshlrev_b32 v5, 2, v2
    v_xor_b32 v5, v5, v3
    v_lshlrev_b32 v5, 4, v5
    v_lshl_add_u32 v{DV}, v4, 8, v5''')
    for i in dma('K', 0, -1) + dma('K', 1, -1): e(i)
    for i in dma('V', 1, -1): e(i)
    for i in dma('K', 0, 0) + dma('V', 0, 0) + dma('K', 1, 0) + dma('V', 1, 0): e(i)
    for i in dma('K', 0, 1) + dma('V', 0, 1) + dma('K', 1, 1): e(i)
    e(f'''v_and_b32 v2, 31, v0
    v_lshrrev_b32 v3, 5, v0
    v_and_b32 v4, 15, v0
    v_xor_b32 v3, v3, v4
    v_lshlrev_b32 v3, 4, v3
    v_lshl_add_u32 v3, v2, 8, v3''')
    for s in range(8):
        e(f'v_xor_b32 v{KA+s}, {32*s}, v3')
    tr_lane_addr(e, 9, 256, 32, 2, 3)
    e('v_add_u32 v9, 0x10000, v9')
    e('v_bfe_u32 v2, v0, 2, 2')
    for t in range(4):
        e(f'v_xor_b32 v3, {t}, v2')
        e(f'v_lshl_add_u32 v{VA+t}, v3, 6, v9')
    for i in range(128): e(f'v_accvgpr_write_b32 a{i}, 0')
    e('s_mul_i32 s49, s2, 20736')
    e('s_mul_i32 s50, s16, 5184')
    e('s_add_u32 s49, s49, s50')
    e('s_mul_i32 s51, s2, 18432')
    e('s_mul_i32 s50, s16, 4608')
    e('s_add_u32 s51, s51, s50')
    e(f's_mov_b32 s46, {THR}')
    e(f's_mov_b32 s47, {THR}')
    e('s_mov_b32 s48, 0')
    e('s_waitcnt vmcnt(14)')
    e('s_barrier')
    if not OPT('NOPF'): e('buffer_load_dwordx4 v[52:55], v1, s[36:39], s51 offen')
    for s in range(8): e(kread(0, s))
    for X, S, Q in (('A', SA, QA), ('B', SB, QB)):
        for s in range(8):
            e(f'{MF} {rng(S,16)}, {rng(KF+4*s,4)}, {rng(Q+4*s,4)}, {"0" if s == 0 else rng(S,16)}')
    for s in range(8): e(kread(1, s))
    for f in range(1):
        pass
    for S, N in ((SA, NA), (SB, NB)):
        for i in max16(S, MX): e(i)
        e(f'''v_mov_b32 v2, v{MX}
        v_mov_b32 v3, v{MX}
        v_permlane32_swap_b32 v2, v3
        v_max_f32 v2, v2, v3''')
        for i in range(16):
            e(f'v_sub_f32 v{S+i}, v{S+i}, v2')
            e(f'v_sub_f32 v{N+i}, 0, v2')
    e(f'v_mov_b32 v{LA}, 0')
    e(f'v_mov_b32 v{LB}, 0')
    for i in exp_half(SA, PA, LA, 0) + exp_half(SA, PA, LA, 1): e(i)
    for f in range(NV4):
        for i in vread(0, f): e(i)
    e('s_waitcnt lgkmcnt(0)')
    e.stamp(2)
    pro = e.text()
    slows = []
    def body(e):
        for j in range(8):
            qk = lambda S, N, Q: [f'{MF} {rng(S,16)}, {rng(KF+4*s,4)}, {rng(Q+4*s,4)}, {rng(N,16) if s == 0 else rng(S,16)}' for s in range(8)]
            pv = lambda O, P: [f'{MF} {arng(O+16*(f&3),16)}, {rng(VF+4*f,4)}, {rng(P+4*(f>>2),4)}, {arng(O+16*(f&3),16)}' for f in range(8)]
            T = f's{47 if j == 7 else 46}'
            d = dma('V', 1, j // 2 + 1) if j % 2 == 0 else dma('V', 0, j // 2 + 2)
            fx = {g: vread(j, 4 + g) for g in range(4)}
            fx[5] = [d[2]]; fx[6] = [d[3]]
            po = {4: [d[0]], 6: [d[4]], 7: ['s_waitcnt lgkmcnt(0)']}
            half(e, qk(SA, NA, QA) + pv(0, PA), exp_half(SB, PB, LB, 0) + exp_half(SB, PB, LB, 1),
                 max16(SA, MX) + [f'v_cmp_lt_f32 vcc, {T}, v{MX}'], 10, fx, po)
            if j % 2 == 0:
                e(f's_waitcnt vmcnt({8 if OPT("NOPF") else 9})')
            if j == 7:
                e(f'v_mov_b32 v{LAF}, v{LA}')
            else:
                e('s_nop 0')
            if not OPT('NOCHK'): e(f's_cbranch_vccnz L_slowA{j}')
            e.label(f'L_slowA{j}_back')
            if j % 2 == 0:
                e('s_barrier')
            d = dma('K', j % 2, j // 2 + 2)
            fx = {s: [kread(j + 2, s)] for s in range(8)}
            fx[8] = [d[2]]; fx[9] = [d[3]]
            po = {7: [d[0]], 9: [d[4]], 14: ['s_waitcnt lgkmcnt(8)']}
            if j % 2 == 0 and not OPT('NOPF'):
                srdn, so = ((36, 51), (52, 49), (56, 49), (96, 49))[j // 2]
                fx[10] = [f'buffer_load_dwordx4 v[52:55], v1, s[{srdn}:{srdn+3}], s{so} offen']
            for f in range(4): fx[11 + f] = vread(j + 1, f)
            half(e, qk(SB, NB, QB) + pv(64, PB), exp_half(SA, PA, LA, 0) + exp_half(SA, PA, LA, 1),
                 max16(SB, MX) + [f'v_cmp_lt_f32 vcc, {T}, v{MX}'], 11, fx, po)
            if not OPT('NOCHK'): e(f's_cbranch_vccnz L_slowB{j}')
            e.label(f'L_slowB{j}_back')
    e.out = []
    body(e)
    e.out = []
    n0 = e.nops
    e.label('L_attn_loop')
    e('s_cmp_eq_u32 s48, 7')
    e(f's_cselect_b32 s47, 0x7f800000, s46')
    body(e)
    print('attn loop nops', e.nops - n0)
    e('s_add_u32 s48, s48, 1')
    e('s_add_u32 s49, s49, 1024')
    e('s_add_u32 s51, s51, 1024')
    e('s_cmp_ge_u32 s48, 6')
    e('s_cselect_b32 s49, 0x7fff0000, s49')
    e('s_cmp_ge_u32 s48, 5')
    e('s_cselect_b32 s51, 0x7fff0000, s51')
    e('s_cmp_lt_u32 s48, 8')
    e('s_cbranch_scc1 L_attn_loop')
    e.stamp(3)
    e('s_waitcnt vmcnt(0)')
    e('s_nop 15')
    e(f's_lshl_b32 s25, s20, 18')
    e(f's_lshl_b32 s26, s17, 14')
    e('s_add_u32 s25, s25, s26')
    for L, O in ((LAF, 0), (LB, 64)):
        e(f'''v_mov_b32 v2, v{L}
        v_mov_b32 v3, v{L}
        v_permlane32_swap_b32 v2, v3
        v_add_f32 v2, v2, v3
        v_rcp_f32 v2, v2''')
        for fr in range(8):
            b = 64 + 8 * (fr % 2); d = 80 + 4 * (fr % 4)
            for i in range(8): e(f'v_accvgpr_read_b32 v{b+i}, a{O+8*fr+i}')
            for i in range(8): e(f'v_mul_f32 v{b+i}, v{b+i}, v2')
            for i in range(4): e(f'v_cvt_pk_bf16_f32 v{d+i}, v{b+2*i}, v{b+2*i+1}')
            e(f'buffer_store_dwordx4 {rng(d,4)}, v1, s[12:15], s25 offen offset:{1024*(fr%4)}')
            if fr % 4 == 3: e('s_add_u32 s25, s25, 4096')
    if OPT('STAMP'): e('s_waitcnt vmcnt(0)')
    e.stamp(4)
    e.stamps_out(5, 0)
    tl_out(e, name)
    e('s_endpgm')
    txt = pro + e.text()
    for j in range(8):
        txt += slow('A', f'L_slowA{j}') + slow('B', f'L_slowB{j}')
    txt += f'L_{name}_end:\n  s_endpgm\n'
    return txt, desc(name, 400, 256), (name, 256, 256, 131072)

NV4 = 4
def interleave(a, b):
    out = []; a = list(a); b = list(b)
    while a or b:
        if a: out.append(a.pop(0))
        if b: out.append(b.pop(0))
    return out
```

```python
import os
from emit import Emit, OPT
from k_small import *

def gemm(e, NS, NT, acc, bfrag, rd, wbatch, xload, ring, RING=6, D=4, extra=None, PRE=3, base=0, vm=None, tailw=None, gst=False, epi=None, TS=1, per=3):
    vm = vm if vm is not None else []
    def put(g, tag):
        for i in g:
            e(i)
            if i.startswith('buffer_'): vm.append(tag)
    have = set(vm)
    PRE = int(os.environ.get('PREW', 2)); PX = int(os.environ.get('PREX', 2))
    for st in range(max(PRE, PX)):
        if st < PRE and ('W', base + st) not in have:
            for g in wbatch(st): put(g, ('W', base + st))
        if xload and st < PX:
            put(xload(st), ('X', st))
    N = NS * 4 * NT
    if epi:
        seq = [(st, s, t) for st in range(NS - TS) for s in range(4) for t in range(NT)]
        seq += [(st, s, t) for t in range(NT) for st in range(NS - TS, NS) for s in range(4)]
    else:
        seq = [(st, s, t) for st in range(NS) for s in range(4) for t in range(NT)]
    eq = []
    def reads(n):
        st, s, t = seq[n]
        if s == 0 and t == 0:
            need = [i for i, tg in enumerate(vm) if tg == ('W', base + st) or tg == ('X', st) and xload]
            later = len(vm) - 1 - max(need)
            e(f's_waitcnt vmcnt({min(later, 63)}) lgkmcnt(0)')
            e('s_barrier')
            if gst and base == 0: e.stamp(st + 1, True)
        r = ring + 4 * (n % RING)
        for h in range(2):
            va, off = rd(st, s, t, h)
            e(f'ds_read_b64_tr_b16 v[{r+2*h}:{r+2*h+1}], v{va} offset:{off}')
    for n in range(D):
        reads(n)
    pendb = []
    extra = list(extra or [])
    nx = len(extra); donex = 0
    for n in range(N):
        st, s, t = seq[n]
        if s == 0 and t == 0:
            if st + PRE < NS:
                pendb = [(g, ('W', base + st + PRE)) for g in wbatch(st + PRE)]
            elif tailw:
                pendb = [(g, ('W', base + st + PRE)) for g in tailw(st + PRE - NS)]
            if xload and st + PX < NS:
                xs = xload(st + PX)
                pendb = [([i], ('X', st + PX)) for i in xs[:3]] + [(xs[3:], ('X', st + PX))] + pendb
        r = ring + 4 * (n % RING)
        ks = st * 4 + s
        c = '0' if ks == 0 else acc(t)
        e(f'v_mfma_f32_32x32x16_bf16 {acc(t)}, v[{r}:{r+3}], {bfrag(ks)}, {c}')
        if n + D < N and seq[n + D][1] == 0 and seq[n + D][2] == 0:
            while pendb: put(*pendb.pop(0))
        if n + D < N:
            reads(n + D)
        if pendb and n % 2 == 0:
            put(*pendb.pop(0))
        if epi and st == NS - 1 and s == 3:
            eq += [(n + 3, i) for i in epi(t)]
        k = 0
        while eq and eq[0][0] <= n and k < per:
            put([eq.pop(0)[1]], ('S', 0)); k += 1
        while extra and donex < nx * (n + 1) / (N - (9 if epi else 2) * NT):
            i = extra.pop(0); donex += 1
            put([i], ('S', 0))
    while pendb: put(*pendb.pop(0))
    while extra: put([extra.pop(0)], ('S', 0))
    while eq: put([eq.pop(0)[1]], ('S', 0))
    return vm

def wave_id(e, sreg):
    e(f'v_lshrrev_b32 v1, 6, v0')
    e('s_nop 0')
    e(f'v_readfirstlane_b32 s{sreg}, v1')
    e('v_and_b32 v0, 63, v0')
    e('s_nop 3')

def tr_lane_addr(e, dst, rowb, ds, t1, t2):
    e(f'''v_lshrrev_b32 v{t1}, 5, v0
    v_lshlrev_b32 v{t1}, 3, v{t1}
    v_bfe_u32 v{t2}, v0, 2, 2
    v_add_u32 v{t1}, v{t1}, v{t2}
    v_mul_u32_u24 v{dst}, {rowb}, v{t1}
    v_bfe_u32 v{t2}, v0, 4, 1
    v_mul_u32_u24 v{t2}, {ds}, v{t2}
    v_add_u32 v{dst}, v{dst}, v{t2}
    v_and_b32 v{t2}, 1, v0
    v_lshl_add_u32 v{dst}, v{t2}, 4, v{dst}
    v_bfe_u32 v{t2}, v0, 1, 1
    v_lshl_add_u32 v{dst}, v{t2}, 3, v{dst}''')

def divmod_const(e, q, r, x, d, t):
    magic = (65536 + d - 1) // d
    assert all((x_ * magic) >> 16 == x_ // d for x_ in range(2304))
    e(f'''v_mul_u32_u24 v{q}, {magic}, v{x}
    v_lshrrev_b32 v{q}, 16, v{q}
    v_mul_u32_u24 v{t}, {d}, v{q}
    v_sub_u32 v{r}, v{x}, v{t}''')

def k_proj(down):
    e = Emit(); name = 'k6_down_kernel' if down else 'k3_oproj_kernel'
    KS = 36 if down else 32
    NFX = 288 if down else 256
    NS = KS // 4
    STG = 64 * 576
    head(e, name, 256)
    srd(e, 4, A_WD if down else A_WO, KS * 16 * 8 * 1152)
    srd(e, 8, A_WS, 64 * NFX * 1024, ACT if down else OF)
    srd(e, 12, A_WS, 8 * FR, PART)
    wave_id(e, 16)
    e.stamp(0)
    if OPT('GST3'): e.stamp(0, True)
    e(f'''s_and_b32 s17, s2, 7
    s_bfe_u32 s18, s2, 0x10003
    s_lshr_b32 s19, s2, 4
    s_lshl_b32 s20, s19, 2
    s_add_u32 s20, s20, s16
    s_mul_i32 s21, s20, {NFX*1024}
    s_mul_i32 s22, s17, {KS*1024}
    s_add_u32 s21, s21, s22
    s_mul_i32 s22, s17, {KS*16*1152}
    s_mul_i32 s23, s18, 576
    s_add_u32 s22, s22, s23
    s_mul_i32 s24, s16, 9216
    s_mul_i32 s25, s17, {FR}
    s_mul_i32 s26, s20, 36864
    s_add_u32 s25, s25, s26
    s_mul_i32 s26, s18, 18432
    s_add_u32 s25, s25, s26
    v_lshlrev_b32 v1, 4, v0''')
    for j in range(9):
        e(f's_mul_i32 s26, s16, 576')
        e(f's_add_u32 s26, s26, {64*j}')
        e(f'v_add_u32 v2, s26, v0')
        divmod_const(e, 3, 4, 2, 36, 5)
        e(f'v_mul_u32_u24 v{10+j}, 1152, v3')
        e(f'v_lshl_add_u32 v{10+j}, v4, 4, v{10+j}')
    tr_lane_addr(e, 20, 576, 32, 2, 3)
    for q in range(1, 4):
        e(f'v_add_u32 v{20+q}, {q*STG}, v20')
    def xl(st):
        return [f'buffer_load_dwordx4 a[{16*st+4*j}:{16*st+4*j+3}], v1, s[8:11], s21 offen offset:{1024*j}' for j in range(4)] + ['s_add_u32 s21, s21, 4096']
    def batch(st):
        b = []
        for j in range(9):
            b.append([f's_add_u32 m0, s24, {(st%4)*STG + 1024*j}', 's_nop 0',
                      f'buffer_load_dwordx4 v{10+j}, s[4:7], s22 offen lds'])
        b[-1].append(f's_add_u32 s22, s22, {64*1152}')
        return b
    def rd(st, s, t, h):
        return (20 + st % 4, (16 * s + 4 * h) * 576 + 64 * t)
    acc = lambda t: f'v[{64+16*t}:{64+16*t+15}]'
    def epi(t):
        L = []
        for a in range(2):
            b = 64 + 16 * t + 8 * a
            d = 48 + 4 * ((2 * t + a) % 4)
            L += [f'v_cvt_pk_bf16_f32 v{d+i}, v{b+2*i}, v{b+2*i+1}' for i in range(4)]
            if (2 * t + a) % 4 == 0 and t:
                L.append('s_add_u32 s25, s25, 4096')
            L.append(f'buffer_store_dwordx4 v[{d}:{d+3}], v1, s[12:15], s25 offen offset:{1024*((2*t+a)%4)}')
        return L
    gemm(e, NS, 9, acc, lambda ks: f'a[{4*ks}:{4*ks+3}]', rd, batch, xl, 24, gst=OPT('GST3') and not down, epi=epi, TS=int(os.environ.get('TS', 1)))
    e.stamp(1)
    if OPT('STAMP') or OPT('GST3'): e('s_waitcnt vmcnt(0)')
    e.stamp(2)
    e.stamps_out(3, 8 if down else 5)
    if OPT('GST3') and not down:
        e.stamp(9, True)
        e.stamps_out(10, 0, True)
    tail(e, name)
    return e.text(), desc(name, 400, 256), (name, 256, 256, 4 * STG)

def silu_mul(t, base, dst, tmp):
    L = []
    for i in range(0, 8, 2):
        P = [(base + i + k, base + 8 + i + k, tmp + (i + k) % 4) for k in range(2)]
        L += [f'v_mul_f32 v{x}, 0xbfb8aa3b, v{g}' for g, u, x in P]
        L += [f'v_exp_f32 v{x}, v{x}' for g, u, x in P]
        L += [f'v_mul_f32 v{u}, v{g}, v{u}' for g, u, x in P]
        L += [f'v_add_f32 v{x}, 1.0, v{x}' for g, u, x in P]
        L += [f'v_rcp_f32 v{x}, v{x}' for g, u, x in P]
        L += [f'v_mul_f32 v{P[0][0]}, v{P[0][1]}, v{P[0][2]}', f'v_mul_f32 v{P[1][0]}, v{P[1][1]}, v{P[1][2]}']
        L.append(f'v_cvt_pk_bf16_f32 v{dst+i//2}, v{P[0][0]}, v{P[1][0]}')
    return L

def k_gateup():
    e = Emit(); name = 'k5_gateup_kernel'
    REG = 64 * 288 + 128
    STG = 2 * 64 * 288 + 256
    head(e, name, 256)
    wave_id(e, 16)
    e('s_cmp_ge_u32 s16, 2')
    e('s_cbranch_scc1 L_k5_up')
    srd(e, 4, A_WG, 576 * 9216)
    e('s_branch L_k5_j')
    e.label('L_k5_up')
    srd(e, 4, A_WU, 576 * 9216)
    e.label('L_k5_j')
    srd(e, 8, A_WS, FR, H2)
    srd(e, 12, A_WS, 64 * 288 * 1024, ACT)
    e(f'''s_and_b32 s17, s2, 7
    s_bfe_u32 s18, s2, 0x10003
    s_lshl_b32 s17, s17, 1
    s_add_u32 s18, s18, s17
    s_lshr_b32 s19, s2, 4
    s_lshl_b32 s20, s19, 2
    s_add_u32 s20, s20, s16
    s_mul_i32 s21, s20, 36864
    s_mul_i32 s22, s18, 576
    s_and_b32 s26, s16, 1
    s_mul_i32 s24, s26, 9216
    s_lshr_b32 s27, s16, 1
    s_mul_i32 s27, s27, {REG}
    s_add_u32 s24, s24, s27
    s_mul_i32 s25, s20, {288*1024}
    s_mul_i32 s27, s18, {18*1024}
    s_add_u32 s25, s25, s27
    v_lshlrev_b32 v1, 4, v0''')
    for j in range(9):
        e(f's_mul_i32 s27, s26, 576')
        e(f's_add_u32 s27, s27, {64*j}')
        e(f'v_add_u32 v2, s27, v0')
        divmod_const(e, 3, 4, 2, 18, 5)
        e(f'v_mul_u32_u24 v{10+j}, 9216, v3')
        e(f'v_lshl_add_u32 v{10+j}, v4, 4, v{10+j}')
    tr_lane_addr(e, 20, 288, REG, 2, 3)
    e(f'v_add_u32 v21, {2*STG}, v20')
    def xl(st):
        return [f'buffer_load_dwordx4 a[{16*st+4*j}:{16*st+4*j+3}], v1, s[8:11], s21 offen offset:{1024*j}' for j in range(4)] + ['s_add_u32 s21, s21, 4096']
    def mk_batch(cb):
        def batch(st):
            b = []
            for j in range(9):
                b.append([f's_add_u32 m0, s24, {((st+9*cb)%4)*STG + 1024*j}', 's_nop 0',
                          f'buffer_load_dwordx4 v{10+j}, s[4:7], s22 offen lds'])
            b[-1].append(f's_add_u32 s22, s22, {64*9216}')
            if st == 8:
                b[-1].append(f's_sub_u32 s22, s22, {576*9216 - 288}')
            return b
        return batch
    def mk_rd(cb):
        def rd(st, s, t, h):
            q = (st + 9 * cb) % 4
            off = (q % 2) * STG + (16 * s + 4 * h) * 288 + 32 * t
            return (20 + q // 2, off)
        return rd
    bf = lambda ks: f'a[{4*ks}:{4*ks+3}]'
    def epi(blk, only=None):
        L = []
        for t in (range(9) if only is None else [only]):
            d = 48 + 4 * (t % 2)
            base = 64 + 16 * t
            if blk == 1:
                if t < 7:
                    base = 64 + 16 * (t % 2)
                    L += [f'v_accvgpr_read_b32 v{base+i}, a{144+16*t+i}' for i in range(16)]
                else:
                    base = 208 + 16 * (t - 7)
            L += silu_mul(t, base, d, 56)
            L.append(f'buffer_store_dwordx4 v[{d}:{d+3}], v1, s[12:15], s25 offen offset:{1024*(t%4)}')
            if t % 4 == 3 or t == 8:
                L.append(f's_add_u32 s25, s25, {4096 if t < 8 else 1024}')
        return L
    acc0 = lambda t: f'v[{64+16*t}:{64+16*t+15}]'
    acc1 = lambda t: f'a[{144+16*t}:{144+16*t+15}]' if t < 7 else f'v[{208+16*(t-7)}:{208+16*(t-7)+15}]'
    e.stamp(0)
    vm = gemm(e, 9, 9, acc0, bf, mk_rd(0), mk_batch(0), xl, 24, tailw=mk_batch(1))
    e.stamp(1)
    e.stamp(2)
    if OPT('K5OLD'):
        gemm(e, 9, 9, acc1, bf, mk_rd(1), mk_batch(1), None, 24, base=9, vm=vm, extra=epi(0))
    else:
        gemm(e, 9, 9, acc1, bf, mk_rd(1), mk_batch(1), None, 24, base=9, vm=vm, extra=epi(0), epi=lambda t: epi(1, t), TS=2, per=2)
    e.stamp(3)
    if OPT('K5OLD'):
        for i in epi(1): e(i)
    if OPT('STAMP'): e('s_waitcnt vmcnt(0)')
    e.stamp(4)
    e.stamps_out(5, 11)
    tail(e, name)
    return e.text(), desc(name, 512, 256), (name, 256, 256, 4 * STG)
```

```python
from emit import Emit, OPT

MOD, H1, X1, H2, OF, PART, ACT = 0, 0x100000, 0x400000, 0x700000, 0x1000000, 0x2000000, 0xE00000
FR = 64 * 36 * 1024
A_X, A_K, A_V, A_WQ, A_WO, A_WG, A_WU, A_WD, A_C, A_WM, A_OUT, A_WS = 0, 8, 16, 24, 32, 48, 56, 64, 72, 80, 88, 104

def srd(e, r, arg, size, off=0, tmp=4):
    e(f's_load_dwordx2 s[{r}:{r+1}], s[0:1], {arg}')
    e('s_waitcnt lgkmcnt(0)')
    if off:
        e(f's_add_u32 s{r}, s{r}, {off}')
        e(f's_addc_u32 s{r+1}, s{r+1}, 0')
    e(f's_mov_b32 s{r+2}, {size}')
    e(f's_mov_b32 s{r+3}, 0x00020000')

def head(e, name, nwg):
    e.raw(f'.globl {name}\n.p2align 8\n.type {name},@function\n{name}:')
    e(f's_cmp_ge_u32 s2, {nwg}')
    e(f's_cbranch_scc1 L_{name}_end')
    if OPT('TL'):
        e('s_memrealtime s[90:91]')
        e('s_waitcnt lgkmcnt(0)')

def tl_out(e, name):
    if OPT('TL'):
        k = int(name[1])
        e(f'''s_memrealtime s[92:93]
        s_load_dwordx2 s[80:81], s[0:1], 96
        s_waitcnt lgkmcnt(0)
        s_mov_b32 s82, 256
        s_mov_b32 s83, 0x20000
        s_cmp_lg_u32 s2, 17
        s_cbranch_scc1 L_notl{k}
        v_mov_b32 v2, s90
        v_mov_b32 v3, s92
        v_mov_b32 v4, {8*k}
        buffer_store_dwordx2 v[2:3], v4, s[80:83], 0 offen
        s_waitcnt vmcnt(0)''')
        e.label(f'L_notl{k}')

def tail(e, name):
    tl_out(e, name)
    e.label(f'L_{name}_end')
    e('s_endpgm')

def desc(name, vgpr, accum, sgpr=102):
    return f'''.p2align 6
.amdhsa_kernel {name}
  .amdhsa_next_free_vgpr {vgpr}
  .amdhsa_next_free_sgpr {sgpr}
  .amdhsa_accum_offset {accum}
  .amdhsa_group_segment_fixed_size 0
  .amdhsa_kernarg_size 112
  .amdhsa_user_sgpr_count 2
  .amdhsa_user_sgpr_kernarg_segment_ptr 1
  .amdhsa_system_sgpr_workgroup_id_x 1
.end_amdhsa_kernel
'''

def unpack(e, dst, src, n, smask):
    for i in range(n):
        e(f'v_lshlrev_b32 v{dst+2*i}, 16, v{src+i}')
        e(f'v_and_b32 v{dst+2*i+1}, {smask}, v{src+i}')

NMOD = 108
QSCALE = 0x3e0293ee

def mod_part(e):
    srd(e, 4, A_WM, 576 * 3456 * 2)
    srd(e, 8, A_C, 576 * 2)
    srd(e, 12, A_WS, 3456 * 4, MOD)
    e('''s_mov_b32 s16, 0xffff0000
    s_lshl_b32 s17, s2, 6
    v_and_b32 v1, 3, v0
    v_lshrrev_b32 v2, 2, v0
    v_mul_u32_u24 v4, 62208, v2
    v_lshl_add_u32 v4, v1, 4, v4
    v_mul_u32_u24 v5, 18, v2''')
    for j in range(9):
        e(f'buffer_load_ushort v{10+j}, v5, s[8:11], 0 offen offset:{2*j}')
    for j in range(9):
        e(f'buffer_load_dwordx4 v[{20+4*j}:{23+4*j}], v4, s[4:7], s17 offen')
        if j < 8:
            e('v_add_u32 v4, 6912, v4')
    e('s_waitcnt vmcnt(9)')
    for j in range(9):
        e(f'v_lshlrev_b32 v{10+j}, 16, v{10+j}')
        e(f'v_mul_f32 v6, 0xbfb8aa3b, v{10+j}')
        e('v_exp_f32 v6, v6')
        e('v_add_f32 v6, 1.0, v6')
        e('v_rcp_f32 v6, v6')
        e(f'v_mul_f32 v6, v{10+j}, v6')
        e('v_cvt_pk_bf16_f32 v6, v6, v6')
        e(f'v_lshlrev_b32 v{10+j}, 16, v6')
    for i in range(8):
        e(f'v_mov_b32 v{60+i}, 0')
    for j in range(9):
        e(f's_waitcnt vmcnt({8-j})')
        unpack(e, 70, 20 + 4 * j, 4, 's16')
        for i in range(8):
            e(f'v_fmac_f32 v{60+i}, v{70+i}, v{10+j}')
    e('''v_lshlrev_b32 v6, 7, v2
    v_lshl_add_u32 v6, v1, 5, v6
    ds_write_b128 v6, v[60:63]
    ds_write_b128 v6, v[64:67] offset:16
    s_waitcnt lgkmcnt(0)
    s_barrier
    v_and_b32 v1, 31, v0
    v_lshrrev_b32 v2, 5, v0
    v_lshlrev_b32 v6, 10, v2
    v_lshl_add_u32 v6, v1, 2, v6''')
    for i in range(8):
        e(f'ds_read_b32 v{20+i}, v6 offset:{128*i}')
    for i in range(1, 8):
        e(f'v_add_f32 v20, v20, v{20+i}')
    e('''v_lshlrev_b32 v6, 2, v0
    ds_write_b32 v6, v20 offset:8192
    s_waitcnt lgkmcnt(0)
    s_barrier
    v_readfirstlane_b32 s18, v0
    s_nop 3
    s_cmp_ge_u32 s18, 64
    s_cbranch_scc1 L_mod_done
    v_lshlrev_b32 v6, 2, v1''')
    for i in range(8):
        e(f'ds_read_b32 v{20+i}, v6 offset:{8192+128*i}')
    for i in range(1, 8):
        e(f'v_add_f32 v20, v20, v{20+i}')
    e('''v_cvt_pk_bf16_f32 v20, v20, v20
    v_lshlrev_b32 v20, 16, v20
    s_lshl_b32 s17, s2, 7
    v_cmp_gt_u32 vcc, 32, v0
    s_and_saveexec_b64 s[18:19], vcc
    buffer_store_dword v20, v6, s[12:15], s17 offen''')
    e.label('L_mod_done')

def k_mod():
    e = Emit(); name = 'k0_mod_kernel'
    head(e, name, NMOD)
    mod_part(e)
    tail(e, name)
    return e.text(), desc(name, 80, 80), (name, NMOD, 256, 9216)

def row_reduce(e, v, ldsoff, t1, t2, vwaddr, vraddr):
    e(f'v_add_f32_dpp v{v}, v{v}, v{v} row_ror:8 row_mask:0xf bank_mask:0xf')
    for sw in ('v_permlane16_swap_b32', 'v_permlane32_swap_b32'):
        e(f'v_mov_b32 v{t1}, v{v}')
        e(f'v_mov_b32 v{t2}, v{v}')
        e(f'{sw} v{t1}, v{t2}')
        e(f'v_add_f32 v{v}, v{t1}, v{t2}')
    e(f'ds_write_b32 v{vwaddr}, v{v} offset:{ldsoff}')
    e('s_waitcnt lgkmcnt(0)')
    e('s_barrier')
    for w in range(9):
        e(f'ds_read_b32 v{70+w}, v{vraddr} offset:{ldsoff+w*256}')
    e(f'v_add_f32 v{v}, v70, v71')
    for w in range(2, 9):
        e(f'v_add_f32 v{v}, v{v}, v{70+w}')

def k_row(mode):
    e = Emit(); name = {1: 'k1_ln_kernel', 2: 'k4_red_kernel', 3: 'k7_red_kernel'}[mode]
    head(e, name, 256)
    if mode == 3:
        srd(e, 4, A_WS, FR, X1)
    else:
        srd(e, 4, A_X, FR)
    srd(e, 8, A_WS, 3456 * 4, MOD)
    srd(e, 12, A_WS, 8 * FR, PART)
    if mode == 3:
        srd(e, 16, A_OUT, FR)
    else:
        srd(e, 16, A_WS, FR, H1 if mode == 1 else H2)
    srd(e, 20, A_WS, FR, X1)
    e('''s_mov_b32 s24, 0xffff0000
    v_and_b32 v1, 7, v0
    v_bfe_u32 v2, v0, 3, 1
    v_lshrrev_b32 v3, 4, v0
    s_lshl_b32 s25, s2, 3
    v_add_u32 v4, s25, v1
    v_mul_u32_u24 v4, 1152, v4
    v_lshl_add_u32 v4, v3, 5, v4
    v_lshl_add_u32 v4, v2, 4, v4
    s_lshr_b32 s26, s2, 2
    s_mul_i32 s26, s26, 36864
    s_and_b32 s27, s2, 3
    s_lshl_b32 s27, s27, 7
    s_add_u32 s26, s26, s27
    v_lshlrev_b32 v5, 10, v3
    v_lshl_add_u32 v5, v2, 9, v5
    v_lshl_add_u32 v5, v1, 4, v5
    v_add_u32 v5, s26, v5
    v_lshlrev_b32 v6, 6, v3
    v_lshl_add_u32 v6, v2, 5, v6
    v_lshlrev_b32 v7, 2, v0
    v_lshlrev_b32 v8, 2, v1''')
    e('buffer_load_dwordx4 v[10:13], v4, s[4:7], 0 offen')
    def modload(idx, dst, fl=''):
        e(f's_mov_b32 s28, {idx*2304}')
        e(f'buffer_load_dwordx4 v[{dst}:{dst+3}], v6, s[8:11], s28 offen{fl}')
        e(f'buffer_load_dwordx4 v[{dst+4}:{dst+7}], v6, s[8:11], s28 offen offset:16{fl}')
    if mode >= 2:
        for p in range(8):
            e(f's_mov_b32 s28, {p*FR}')
            e(f'buffer_load_dwordx4 v[{80+4*p}:{83+4*p}], v5, s[12:15], s28 offen')
        modload(2 if mode == 2 else 5, 40)
    if mode <= 2:
        modload(0 if mode == 1 else 3, 48)
        modload(1 if mode == 1 else 4, 56)
    if mode == 1 and not OPT('NOPF'):
        srd(e, 32, A_WQ, 576 * 8192)
        e('s_mul_i32 s29, s2, 18432')
        e('v_lshlrev_b32 v9, 4, v0')
        e('buffer_load_dwordx4 v[100:103], v9, s[32:35], s29 offen')
        e('s_add_u32 s29, s29, 9216')
        e('buffer_load_dwordx4 v[104:107], v9, s[32:35], s29 offen')
    e('s_waitcnt vmcnt(%d)' % (2 if mode == 1 and not OPT('NOPF') else 0))
    unpack(e, 20, 10, 4, 's24')
    if mode >= 2:
        unpack(e, 30, 80, 4, 's24')
        for p in range(1, 8):
            unpack(e, 64, 80 + 4 * p, 4, 's24')
            for i in range(8):
                e(f'v_add_f32 v{30+i}, v{30+i}, v{64+i}')
        for i in range(4):
            e(f'v_cvt_pk_bf16_f32 v{64+i}, v{30+2*i}, v{31+2*i}')
        unpack(e, 30, 64, 4, 's24')
        for i in range(8):
            e(f'v_mul_f32 v{30+i}, v{30+i}, v{40+i}')
        for i in range(4):
            e(f'v_cvt_pk_bf16_f32 v{64+i}, v{30+2*i}, v{31+2*i}')
        unpack(e, 30, 64, 4, 's24')
        for i in range(8):
            e(f'v_add_f32 v{20+i}, v{20+i}, v{30+i}')
        for i in range(4):
            e(f'v_cvt_pk_bf16_f32 v{64+i}, v{20+2*i}, v{21+2*i}')
        if mode == 3:
            e('buffer_store_dwordx4 v[64:67], v4, s[16:19], 0 offen')
        else:
            e('buffer_store_dwordx4 v[64:67], v4, s[20:23], 0 offen')
            unpack(e, 20, 64, 4, 's24')
    if mode <= 2:
        e('v_add_f32 v9, v20, v21')
        for i in range(2, 8):
            e(f'v_add_f32 v9, v9, v{20+i}')
        row_reduce(e, 9, 0, 14, 15, 7, 8)
        e('v_mul_f32 v9, 0x3ae38e39, v9')
        for i in range(8):
            e(f'v_sub_f32 v{20+i}, v{20+i}, v9')
        e('v_mul_f32 v9, v20, v20')
        for i in range(1, 8):
            e(f'v_fmac_f32 v9, v{20+i}, v{20+i}')
        row_reduce(e, 9, 4096, 14, 15, 7, 8)
        e('v_mul_f32 v9, 0x3ae38e39, v9')
        e('v_add_f32 v9, 0x3727c5ac, v9')
        e('v_rsq_f32 v9, v9')
        for i in range(8):
            e(f'v_mul_f32 v{20+i}, v{20+i}, v9')
            e(f'v_add_f32 v{56+i}, 1.0, v{56+i}')
        for i in range(8):
            e(f'v_fma_f32 v{20+i}, v{20+i}, v{56+i}, v{48+i}')
        if mode == 1:
            for i in range(8):
                e(f'v_mul_f32 v{20+i}, {QSCALE}, v{20+i}')
        for i in range(4):
            e(f'v_cvt_pk_bf16_f32 v{68+i}, v{20+2*i}, v{21+2*i}')
        e('buffer_store_dwordx4 v[68:71], v5, s[16:19], 0 offen')
    tail(e, name)
    return e.text(), desc(name, 112, 112), (name, 256, 576, 8192)
```

```python
import os
from emit import Emit, OPT
from k_small import *
from k_gemm import gemm, wave_id, tr_lane_addr, early_x, put_early

SA, SB, NA, NB, KF, VF, PA, PB = 64, 80, 96, 112, 128, 160, 28, 36
PK = OPT('PKADD')
LA, LB, MX, LAF = (56, 58, 46, 60) if PK else (44, 45, 46, 48)
QA, QB = 192, 224
KA, VA = 10, 18
DK0, DK1, DV = 60, 61, 62
THR = 0x42700000
rng = lambda b, n: f'v[{b}:{b+n-1}]'
arng = lambda b, n: f'a[{b}:{b+n-1}]'
MF = 'v_mfma_f32_32x32x16_bf16'

def exp_half(S, P, L, half):
    b = S + 8 * half; p = P + 4 * half
    E = lambda i: f'v_exp_f32 v{b+i}, v{b+i}'
    A = lambda i: f'v_add_f32 v{L}, v{L}, v{b+i}'
    C = lambda i: f'v_cvt_pk_bf16_f32 v{p+i}, v{b+2*i}, v{b+2*i+1}'
    if PK:
        A2 = lambda i: f'v_pk_add_f32 v[{L}:{L+1}], v[{L}:{L+1}], v[{b+2*i}:{b+2*i+1}]'
        return [E(0), E(1), E(2), A2(0), E(3), C(0), E(4), A2(1), E(5), C(1), E(6), A2(2), E(7), C(2), A2(3), C(3)]
    return [E(0), E(1), A(0), E(2), A(1), E(3), A(2), C(0), E(4), A(3), E(5), A(4), C(1), E(6), A(5), E(7), A(6), C(2), A(7), C(3)]

def max16(S, m):
    L = [f'v_max3_f32 v{m}, v{S}, v{S+1}, v{S+2}']
    for i in range(3, 15, 2):
        L.append(f'v_max3_f32 v{m}, v{m}, v{S+i}, v{S+i+1}')
    L.append(f'v_max_f32 v{m}, v{m}, v{S+15}')
    return L

def kslot(j): return (((j - 2) // 2) % 4) * 16384 + (j % 2) * 8192
def vslot(j): return (((j - 1) // 2) % 4) * 16384 + ((j - 1) % 2) * 8192
def kread(j, s): return f'ds_read_b128 {rng(KF+4*s, 4)}, v{KA+s} offset:{kslot(j)}'
def vread(j, f):
    u, t = f >> 2, f & 3
    return [f'ds_read_b64_tr_b16 {rng(VF+4*f+2*h, 2)}, v{VA+t} offset:{vslot(j) + (16*u+4*h)*256}' for h in range(2)]
def dma(kind, tau, stage):
    q = stage % 4
    if kind == 'K':
        s = 40 + tau
        return [f's_add_u32 m0, s25, {q*16384 + tau*8192}', 's_nop 0',
                f'buffer_load_dwordx4 v{DK0}, s[28:31], s{s} offen lds',
                f'buffer_load_dwordx4 v{DK1}, s[28:31], s{s} offen offset:1024 lds', f's_add_u32 s{s}, s{s}, 16384']
    s = 42 + tau
    return [f's_add_u32 m0, s25, {65536 + q*16384 + tau*8192}', 's_nop 0',
            f'buffer_load_dwordx4 v{DV}, s[32:35], s{s} offen lds',
            f'buffer_load_dwordx4 v{DV}, s[32:35], s{s} offen offset:1024 lds', f's_add_u32 s{s}, s{s}, 16384']

CD = int(os.environ.get('CD', 24))
def cost(i):
    if i.startswith('v_exp'): return 8
    if i.startswith('buffer_'): return CD
    return 4

def half(e, mfmas, main, mx, mx0, fixed, post):
    n = len(mfmas)
    fc = [sum(cost(i) for i in fixed.get(g, []) + post.get(g, [])) for g in range(n)]
    cap = [max(0, 24 - c) for c in fc]
    LG = n - 1 - int(os.environ.get('EMPTY', 1))
    for g in range(LG + 1, n): cap[g] = 0
    W = sum(cost(i) for i in main + mx)
    tot = sum(cap); done = 0; cum = 0
    main = list(main); mx = list(mx); tog = 0
    MXR = int(os.environ.get('MXR', 100))
    for g in range(n):
        e(mfmas[g])
        for i in fixed.get(g, []): e(i)
        cum += cap[g]
        while main or (mx and g >= mx0):
            pick = mx if (mx and g >= mx0 and (not main or tog % MXR != MXR - 1)) else main or mx
            tog += 1
            c = cost(pick[0])
            if g < LG and done + c / 2 > W * cum / tot: break
            e(pick.pop(0)); done += c
        for i in post.get(g, []): e(i)

def group(e, mfmas, fill, fixed=None):
    n = len(mfmas); fixed = fixed or {}
    cost = lambda i: 8 if i.startswith('v_exp') else 4
    tot = sum(cost(i) for i in fill) + sum(cost(i) for v in fixed.values() for i in v)
    done = 0; fill = list(fill)
    for g, m in enumerate(mfmas):
        e(m)
        for i in fixed.get(g, []):
            e(i); done += cost(i)
        while fill and (done + cost(fill[0]) / 2 <= tot * (g + 1) / n or g == n - 1):
            i = fill.pop(0); e(i); done += cost(i)

def slow(X, lbl, first=False):
    S, N, L, O = (SA, NA, LA, 0) if X == 'A' else (SB, NB, LB, 64)
    e = Emit()
    e.label(lbl)
    e('s_nop 15')
    e(f'v_mov_b32 v2, v{MX}')
    e(f'v_mov_b32 v3, v{MX}')
    e('v_permlane32_swap_b32 v2, v3')
    e('v_max_f32 v2, v2, v3')
    e('v_max_f32 v2, 0, v2')
    e('v_sub_f32 v3, 0, v2')
    e('v_exp_f32 v3, v3')
    for i in range(16):
        e(f'v_sub_f32 v{S+i}, v{S+i}, v2')
        e(f'v_sub_f32 v{N+i}, v{N+i}, v2')
    e(f'v_mul_f32 v{L}, v{L}, v3')
    if PK: e(f'v_mul_f32 v{L+1}, v{L+1}, v3')
    for i in range(0, 64, 4):
        for k in range(4): e(f'v_accvgpr_read_b32 v{4+k}, a{O+i+k}')
        for k in range(4): e(f'v_mul_f32 v{4+k}, v{4+k}, v3')
        for k in range(4): e(f'v_accvgpr_write_b32 a{O+i+k}, v{4+k}')
    e('s_nop 3')
    e(f's_branch {lbl}_back')
    return e.text()

def k_attn():
    e = Emit(); name = 'k2_attn_kernel'
    head(e, name, 256)
    srd(e, 4, A_WQ, 576 * 8192)
    srd(e, 8, A_WS, FR, H1)
    srd(e, 12, A_WS, 64 * 256 * 1024, OF)
    srd(e, 28, A_K, 524288)
    srd(e, 32, A_V, 524288)
    srd(e, 36, A_WO, 4096 * 1152)
    srd(e, 52, A_WG, 576 * 9216)
    srd(e, 56, A_WU, 576 * 9216)
    srd(e, 96, A_WD, 4608 * 1152)
    wave_id(e, 16)
    e.stamp(0)
    e(f'''s_and_b32 s17, s2, 7
    s_lshl_b32 s17, s17, 1
    s_bfe_u32 s18, s2, 0x10003
    s_add_u32 s17, s17, s18
    s_lshr_b32 s18, s2, 4
    s_lshl_b32 s20, s18, 2
    s_add_u32 s20, s20, s16
    s_mul_i32 s21, s20, 36864
    s_lshl_b32 s22, s17, 9
    s_lshl_b32 s24, s16, 13
    s_lshl_b32 s26, s17, 19
    v_lshlrev_b32 v1, 4, v0''')
    srd_done(e)
    e('''s_add_u32 s28, s28, s26
    s_addc_u32 s29, s29, 0
    s_add_u32 s32, s32, s26
    s_addc_u32 s33, s33, 0''')
    def xl(st):
        return [f'buffer_load_dwordx4 a[{16*st+4*j}:{16*st+4*j+3}], v1, s[8:11], s21 offen offset:{1024*j}' for j in range(4)] + ['s_add_u32 s21, s21, 4096']
    def batch(st):
        b = []
        for j in range(8):
            b.append([f's_add_u32 m0, s24, {(st%4)*32768 + 1024*j}', 's_nop 0',
                      f'buffer_load_dwordx4 v{10+j}, s[4:7], s22 offen lds'])
        b[-1].append(f's_add_u32 s22, s22, {64*8192}')
        return b
    vm0 = early_x(e, xl)
    b0 = batch(0)
    for j in range(8):
        e(f'''s_lshl_b32 s26, s16, 4
        s_add_u32 s26, s26, {2*j}
        v_lshrrev_b32 v2, 5, v0
        v_add_u32 v2, s26, v2
        v_and_b32 v3, 3, v2
        v_lshlrev_b32 v3, 2, v3
        v_and_b32 v4, 31, v0
        v_xor_b32 v3, v3, v4
        v_lshlrev_b32 v2, 13, v2
        v_lshl_add_u32 v{10+j}, v3, 4, v2''')
        put_early(e, vm0, b0[j], ('W', 0))
    tr_lane_addr(e, 9, 512, 32, 2, 3)
    e('v_bfe_u32 v2, v0, 2, 2')
    for t in range(4):
        e(f'v_xor_b32 v3, {t}, v2')
        e(f'v_lshl_add_u32 v{20+t}, v3, 6, v9')
        e(f'v_add_u32 v{24+t}, 0x10000, v{20+t}')
    def xl(st):
        return [f'buffer_load_dwordx4 a[{16*st+4*j}:{16*st+4*j+3}], v1, s[8:11], s21 offen offset:{1024*j}' for j in range(4)] + ['s_add_u32 s21, s21, 4096']
    e(f'''s_lshl_b32 s25, s16, 11
    s_mov_b32 s40, 0
    s_mov_b32 s41, 8192
    s_mov_b32 s42, 8192
    s_mov_b32 s43, 0
    s_lshr_b32 s26, s16, 1
    s_lshl_b32 s26, s26, 4
    s_and_b32 s27, s16, 1
    s_lshl_b32 s23, s27, 2
    s_add_u32 s26, s26, s23
    s_lshl_b32 s27, s27, 3
    v_lshrrev_b32 v2, 4, v0
    v_and_b32 v3, 15, v0
    v_add_u32 v4, s26, v2
    v_add_u32 v5, s27, v2
    v_xor_b32 v6, v5, v3
    v_lshlrev_b32 v6, 4, v6
    v_lshl_add_u32 v{DK0}, v4, 8, v6
    v_add_u32 v4, 8, v4
    v_add_u32 v5, 4, v5
    v_xor_b32 v6, v5, v3
    v_lshlrev_b32 v6, 4, v6
    v_lshl_add_u32 v6, v4, 8, v6
    v_subrev_u32 v{DK1}, 1024, v6
    s_lshl_b32 s27, s16, 3
    v_add_u32 v4, s27, v2
    v_lshlrev_b32 v5, 2, v2
    v_xor_b32 v5, v5, v3
    v_lshlrev_b32 v5, 4, v5
    v_lshl_add_u32 v{DV}, v4, 8, v5''')
    def rd(st, s, t, h):
        q = st % 4
        return (20 + 4 * (q // 2) + (t & 3), (q % 2) * 32768 + (16 * s + 4 * h) * 512 + (t >> 2) * 256)
    timed = [(32 + 2 * i, f'v_accvgpr_write_b32 a{i}, 0') for i in range(112)]
    first = dma('K', 0, -1) + dma('K', 1, -1) + dma('V', 1, -1)
    timed += [(258 + i, x) for i, x in enumerate(first)]
    timed += [(274 + i, f'v_accvgpr_write_b32 a{112 + i}, 0') for i in range(16)]
    timed.sort(key=lambda x: x[0])
    gemm(e, 9, 8, lambda t: rng(64 + 16 * t, 16), lambda ks: arng(4 * ks, 4), rd, batch, xl, 28, vm=vm0, timed=timed,
         epi=lambda t: [f'v_cvt_pk_bf16_f32 v{QA+8*t+i}, v{64+16*t+2*i}, v{64+16*t+2*i+1}' for i in range(8)])
    e('s_barrier')
    e.stamp(1)
    for i in dma('K', 0, 0) + dma('V', 0, 0) + dma('K', 1, 0) + dma('V', 1, 0): e(i)
    for i in dma('K', 0, 1) + dma('V', 0, 1) + dma('K', 1, 1): e(i)
    e(f'''v_and_b32 v2, 31, v0
    v_lshrrev_b32 v3, 5, v0
    v_and_b32 v4, 15, v0
    v_xor_b32 v3, v3, v4
    v_lshlrev_b32 v3, 4, v3
    v_lshl_add_u32 v3, v2, 8, v3''')
    for s in range(8):
        e(f'v_xor_b32 v{KA+s}, {32*s}, v3')
    tr_lane_addr(e, 9, 256, 32, 2, 3)
    e('v_add_u32 v9, 0x10000, v9')
    e('v_bfe_u32 v2, v0, 2, 2')
    for t in range(4):
        e(f'v_xor_b32 v3, {t}, v2')
        e(f'v_lshl_add_u32 v{VA+t}, v3, 6, v9')
    e('s_mul_i32 s49, s2, 20736')
    e('s_mul_i32 s50, s16, 5184')
    e('s_add_u32 s49, s49, s50')
    e('s_mul_i32 s51, s2, 18432')
    e('s_mul_i32 s50, s16, 4608')
    e('s_add_u32 s51, s51, s50')
    e(f's_mov_b32 s46, {THR}')
    e(f's_mov_b32 s47, {THR}')
    e('s_mov_b32 s48, 0')
    e('s_waitcnt vmcnt(14)')
    e('s_barrier')
    if not OPT('NOPF'): e('buffer_load_dwordx4 v[52:55], v1, s[36:39], s51 offen')
    for s in range(8): e(kread(0, s))
    for X, S, Q in (('A', SA, QA), ('B', SB, QB)):
        for s in range(8):
            e(f'{MF} {rng(S,16)}, {rng(KF+4*s,4)}, {rng(Q+4*s,4)}, {"0" if s == 0 else rng(S,16)}')
    for s in range(8): e(kread(1, s))
    for f in range(1):
        pass
    for S, N in ((SA, NA), (SB, NB)):
        for i in max16(S, MX): e(i)
        e(f'''v_mov_b32 v2, v{MX}
        v_mov_b32 v3, v{MX}
        v_permlane32_swap_b32 v2, v3
        v_max_f32 v2, v2, v3''')
        for i in range(16):
            e(f'v_sub_f32 v{S+i}, v{S+i}, v2')
            e(f'v_sub_f32 v{N+i}, 0, v2')
    e(f'v_mov_b32 v{LA}, 0')
    e(f'v_mov_b32 v{LB}, 0')
    if PK:
        e(f'v_mov_b32 v{LA+1}, 0')
        e(f'v_mov_b32 v{LB+1}, 0')
    for i in exp_half(SA, PA, LA, 0) + exp_half(SA, PA, LA, 1): e(i)
    for f in range(NV4):
        for i in vread(0, f): e(i)
    e('s_waitcnt lgkmcnt(0)')
    e.stamp(2)
    pro = e.text()
    slows = []
    def body(e):
        for j in range(8):
            qk = lambda S, N, Q: [f'{MF} {rng(S,16)}, {rng(KF+4*s,4)}, {rng(Q+4*s,4)}, {rng(N,16) if s == 0 else rng(S,16)}' for s in range(8)]
            pv = lambda O, P: [f'{MF} {arng(O+16*(f&3),16)}, {rng(VF+4*f,4)}, {rng(P+4*(f>>2),4)}, {arng(O+16*(f&3),16)}' for f in range(8)]
            T = f's{47 if j == 7 else 46}'
            d = dma('V', 1, j // 2 + 1) if j % 2 == 0 else dma('V', 0, j // 2 + 2)
            fx = {g: vread(j, 4 + g) for g in range(4)}
            fx[5] = [d[2]]; fx[6] = [d[3]]
            po = {4: [d[0]], 6: [d[4]], 7: ['s_waitcnt lgkmcnt(0)']}
            half(e, qk(SA, NA, QA) + pv(0, PA), exp_half(SB, PB, LB, 0) + exp_half(SB, PB, LB, 1),
                 max16(SA, MX) + [f'v_cmp_lt_f32 vcc, {T}, v{MX}'], 10, fx, po)
            if j % 2 == 0:
                e(f's_waitcnt vmcnt({8 if OPT("NOPF") else 9})')
            if j == 7:
                e(f'v_mov_b32 v{LAF}, v{LA}')
                if PK: e(f'v_mov_b32 v{LAF+1}, v{LA+1}')
            else:
                e('s_nop 0')
            if not OPT('NOCHK'): e(f's_cbranch_vccnz L_slowA{j}')
            e.label(f'L_slowA{j}_back')
            if j % 2 == 0:
                e('s_barrier')
            d = dma('K', j % 2, j // 2 + 2)
            fx = {s: [kread(j + 2, s)] for s in range(8)}
            fx[8] = [d[2]]; fx[9] = [d[3]]
            po = {7: [d[0]], 9: [d[4]], 14: ['s_waitcnt lgkmcnt(8)']}
            if j % 2 == 0 and not OPT('NOPF'):
                srdn, so = ((36, 51), (52, 49), (56, 49), (96, 49))[j // 2]
                fx[10] = [f'buffer_load_dwordx4 v[52:55], v1, s[{srdn}:{srdn+3}], s{so} offen']
            for f in range(4): fx[11 + f] = vread(j + 1, f)
            half(e, qk(SB, NB, QB) + pv(64, PB), exp_half(SA, PA, LA, 0) + exp_half(SA, PA, LA, 1),
                 max16(SB, MX) + [f'v_cmp_lt_f32 vcc, {T}, v{MX}'], 11, fx, po)
            if not OPT('NOCHK'): e(f's_cbranch_vccnz L_slowB{j}')
            e.label(f'L_slowB{j}_back')
    e.out = []
    body(e)
    e.out = []
    n0 = e.nops
    e.label('L_attn_loop')
    e('s_cmp_eq_u32 s48, 7')
    e(f's_cselect_b32 s47, 0x7f800000, s46')
    body(e)
    print('attn loop nops', e.nops - n0)
    e('s_add_u32 s48, s48, 1')
    e('s_add_u32 s49, s49, 1024')
    e('s_add_u32 s51, s51, 1024')
    e('s_cmp_ge_u32 s48, 6')
    e('s_cselect_b32 s49, 0x7fff0000, s49')
    e('s_cmp_ge_u32 s48, 5')
    e('s_cselect_b32 s51, 0x7fff0000, s51')
    e('s_cmp_lt_u32 s48, 8')
    e('s_cbranch_scc1 L_attn_loop')
    e.stamp(3)
    e('s_waitcnt vmcnt(0)')
    e('s_nop 15')
    e(f's_lshl_b32 s23, s20, 18')
    e(f's_lshl_b32 s26, s17, 14')
    e('s_add_u32 s23, s23, s26')
    for L, O in ((LAF, 0), (LB, 64)):
        if PK: e(f'v_add_f32 v{L}, v{L}, v{L+1}')
        e(f'''v_mov_b32 v2, v{L}
        v_mov_b32 v3, v{L}
        v_permlane32_swap_b32 v2, v3
        v_add_f32 v2, v2, v3
        v_rcp_f32 v2, v2''')
        for fr in range(8):
            b = 64 + 8 * (fr % 2); d = 80 + 4 * (fr % 4)
            for i in range(8): e(f'v_accvgpr_read_b32 v{b+i}, a{O+8*fr+i}')
            if OPT('NOPKM'):
                for i in range(8): e(f'v_mul_f32 v{b+i}, v{b+i}, v2')
            else:
                for i in range(0, 8, 2): e(f'v_pk_mul_f32 v[{b+i}:{b+i+1}], v[{b+i}:{b+i+1}], v[2:3] op_sel_hi:[1,0]')
            for i in range(4): e(f'v_cvt_pk_bf16_f32 v{d+i}, v{b+2*i}, v{b+2*i+1}')
            e(f'buffer_store_dwordx4 {rng(d,4)}, v1, s[12:15], s23 offen offset:{1024*(fr%4)}')
            if fr % 4 == 3: e('s_add_u32 s23, s23, 4096')
    if OPT('STAMP'): e('s_waitcnt vmcnt(0)')
    e.stamp(4)
    e.stamps_out(5, 0)
    tl_out(e, name)
    e('s_endpgm')
    txt = pro + e.text()
    for j in range(8):
        txt += slow('A', f'L_slowA{j}') + slow('B', f'L_slowB{j}')
    txt += f'L_{name}_end:\n  s_endpgm\n'
    return txt, desc(name, 400, 256), (name, 256, 256, 131072)

NV4 = 4
def interleave(a, b):
    out = []; a = list(a); b = list(b)
    while a or b:
        if a: out.append(a.pop(0))
        if b: out.append(b.pop(0))
    return out
```

```python
import os
from emit import Emit, OPT
from k_small import *

def gemm(e, NS, NT, acc, bfrag, rd, wbatch, xload, ring, RING=6, D=4, extra=None, PRE=3, base=0, vm=None, tailw=None, gst=False, epi=None, TS=1, per=3, timed=None, SPS=4, xlead=0):
    vm = vm if vm is not None else []
    def put(g, tag):
        for i in g:
            e(i)
            if i.startswith('buffer_'): vm.append(tag)
    have = set(vm)
    PRE = int(os.environ.get('PREW', 2)); PX = int(os.environ.get('PREX', 2))
    for st in range(max(PRE, PX)):
        if st < PRE and ('W', base + st) not in have:
            for g in wbatch(st): put(g, ('W', base + st))
        if xload and st < PX and ('X', st) not in have:
            put(xload(st), ('X', st))
    N = NS * SPS * NT
    if epi:
        seq = [(st, s, t) for st in range(NS - TS) for s in range(SPS) for t in range(NT)]
        seq += [(st, s, t) for t in range(NT) for st in range(NS - TS, NS) for s in range(SPS)]
    else:
        seq = [(st, s, t) for st in range(NS) for s in range(SPS) for t in range(NT)]
    eq = []
    def reads(n):
        st, s, t = seq[n]
        if s == 0 and t == 0:
            need = [i for i, tg in enumerate(vm) if tg == ('W', base + st) or tg == ('X', st) and xload]
            later = len(vm) - 1 - max(need)
            e(f's_waitcnt vmcnt({min(later, 63)}) lgkmcnt(0)')
            e('s_barrier')
            if gst and base == 0: e.stamp(st + 1, True)
        r = ring + 4 * (n % RING)
        for h in range(2):
            va, off = rd(st, s, t, h)
            e(f'ds_read_b64_tr_b16 v[{r+2*h}:{r+2*h+1}], v{va} offset:{off}')
    for n in range(D):
        reads(n)
    pendb = []
    extra = list(extra or [])
    nx = len(extra); donex = 0
    for n in range(N):
        st, s, t = seq[n]
        if s == 0 and t == 0:
            early = epi and TS > PRE
            if early and st >= NS - TS:
                pendb = []
            elif st + PRE < NS:
                hi = NS if early and st == NS - TS - 1 else st + PRE + 1
                pendb = [(g, ('W', base + q)) for q in range(st + PRE, hi) for g in wbatch(q)]
            elif tailw:
                pendb = [(g, ('W', base + st + PRE)) for g in tailw(st + PRE - NS)]
            if xload and st + PX < NS and not (early and st >= NS - TS):
                xq = []
                for q in range(st + PX, NS if early and st == NS - TS - 1 else st + PX + 1):
                    xs = xload(q)
                    xq += [([i], ('X', q)) for i in xs[:-2]] + [(xs[-2:], ('X', q))]
                pendb = xq + pendb
            pace = max(1, min(2, (SPS * NT - D) // max(1, len(pendb))))
        r = ring + 4 * (n % RING)
        ks = st * SPS + s
        c = '0' if ks == 0 else acc(t)
        e(f'v_mfma_f32_32x32x16_bf16 {acc(t)}, v[{r}:{r+3}], {bfrag(ks)}, {c}')
        if n + D < N and seq[n + D][1] == 0 and seq[n + D][2] == 0:
            while pendb: put(*pendb.pop(0))
        if n + D < N:
            reads(n + D)
        if pendb and n % pace == 0:
            put(*pendb.pop(0))
        if epi and st == NS - 1 and s == SPS - 1:
            eq += [(n + 3, i) for i in epi(t)]
        while timed and timed[0][0] <= n:
            put([timed.pop(0)[1]], ('T', 0))
        k = 0
        while eq and eq[0][0] <= n and k < per:
            put([eq.pop(0)[1]], ('S', 0)); k += 1
        while extra and n >= xlead and donex < nx * (n + 1 - xlead) / max(1, N - xlead - (SPS * NT * TS + NT if epi else 2 * NT)):
            i = extra.pop(0); donex += 1
            put([i], ('S', 0))
    while pendb: put(*pendb.pop(0))
    while timed: put([timed.pop(0)[1]], ('T', 0))
    while extra: put([extra.pop(0)], ('S', 0))
    while eq: put([eq.pop(0)[1]], ('S', 0))
    return vm

def early_x(e, xl, n=2):
    vm = []
    n = min(n, int(os.environ.get('EX', 2)))
    for st in range(n):
        for i in xl(st):
            e(i)
            if i.startswith('buffer_'): vm.append(('X', st))
    return vm

def put_early(e, vm, group, tag):
    if OPT('NOEARLY'): return
    for i in group:
        e(i)
        if i.startswith('buffer_'): vm.append(tag)

def wave_id(e, sreg):
    e(f'v_lshrrev_b32 v1, 6, v0')
    e('s_nop 0')
    e(f'v_readfirstlane_b32 s{sreg}, v1')
    e('v_and_b32 v0, 63, v0')
    e('s_nop 3')

def tr_lane_addr(e, dst, rowb, ds, t1, t2):
    e(f'''v_lshrrev_b32 v{t1}, 5, v0
    v_lshlrev_b32 v{t1}, 3, v{t1}
    v_bfe_u32 v{t2}, v0, 2, 2
    v_add_u32 v{t1}, v{t1}, v{t2}
    v_mul_u32_u24 v{dst}, {rowb}, v{t1}
    v_bfe_u32 v{t2}, v0, 4, 1
    v_mul_u32_u24 v{t2}, {ds}, v{t2}
    v_add_u32 v{dst}, v{dst}, v{t2}
    v_and_b32 v{t2}, 1, v0
    v_lshl_add_u32 v{dst}, v{t2}, 4, v{dst}
    v_bfe_u32 v{t2}, v0, 1, 1
    v_lshl_add_u32 v{dst}, v{t2}, 3, v{dst}''')

def divmod_const(e, q, r, x, d, t):
    magic = (65536 + d - 1) // d
    assert all((x_ * magic) >> 16 == x_ // d for x_ in range(2304))
    e(f'''v_mul_u32_u24 v{q}, {magic}, v{x}
    v_lshrrev_b32 v{q}, 16, v{q}
    v_mul_u32_u24 v{t}, {d}, v{q}
    v_sub_u32 v{r}, v{x}, v{t}''')

def k_proj(down):
    e = Emit(); name = 'k6_down_kernel' if down else 'k3_oproj_kernel'
    KS = 36 if down else 32
    NFX = 288 if down else 256
    NP = int(os.environ.get('PASSES', 1))
    NT = 9 // NP
    RB = 64 * NT
    SPS = 4 if NP == 1 else 12 if down else 8
    NS = KS // SPS
    ND = SPS * 16 * (RB // 16) // 256
    STG = SPS * 16 * RB
    head(e, name, 256)
    srd(e, 4, A_WD if down else A_WO, KS * 16 * 8 * 1152)
    srd(e, 8, A_WS, 64 * NFX * 1024, ACT if down else OF)
    srd(e, 12, A_WS, 8 * FR, PART)
    wave_id(e, 16)
    e.stamp(0)
    e(f'''s_and_b32 s17, s2, 7
    s_bfe_u32 s18, s2, 0x10003
    s_lshr_b32 s19, s2, 4
    s_lshl_b32 s20, s19, 2
    s_add_u32 s20, s20, s16
    s_mul_i32 s21, s20, {NFX*1024}
    s_mul_i32 s22, s17, {KS*1024}
    s_add_u32 s21, s21, s22
    s_mul_i32 s22, s17, {KS*16*1152}
    s_mul_i32 s23, s18, 576
    s_add_u32 s22, s22, s23
    s_mul_i32 s24, s16, {ND*1024}
    s_mul_i32 s25, s17, {FR}
    s_mul_i32 s26, s20, 36864
    s_add_u32 s25, s25, s26
    s_mul_i32 s26, s18, 18432
    s_add_u32 s25, s25, s26
    v_lshlrev_b32 v1, 4, v0''')
    srd_done(e)
    def xl(st):
        L = []
        for j in range(SPS):
            r = 4 * (SPS * st + j)
            L.append(f'buffer_load_dwordx4 a[{r}:{r+3}], v1, s[8:11], s21 offen offset:{1024*(j%4)}')
            if j % 4 == 3: L.append('s_add_u32 s21, s21, 4096')
        return L
    def mk_batch(p):
        def batch(st):
            b = []
            for j in range(ND):
                b.append([f's_add_u32 m0, s24, {((st+NS*p)%4)*STG + 1024*j}', 's_nop 0',
                          f'buffer_load_dwordx4 v{10+j}, s[4:7], s22 offen lds'])
            b[-1].append(f's_add_u32 s22, s22, {SPS*16*1152}')
            if st == NS - 1:
                b[-1].append(f's_sub_u32 s22, s22, {KS*16*1152 - RB}')
            return b
        return batch
    vm = early_x(e, xl, 2 if NP == 1 else 1)
    b0 = mk_batch(0)(0)
    for j in range(ND):
        e(f's_mul_i32 s26, s16, {64*ND}')
        e(f's_add_u32 s26, s26, {64*j}')
        e(f'v_add_u32 v2, s26, v0')
        divmod_const(e, 3, 4, 2, RB // 16, 5)
        e(f'v_mul_u32_u24 v{10+j}, 1152, v3')
        e(f'v_lshl_add_u32 v{10+j}, v4, 4, v{10+j}')
        put_early(e, vm, b0[j], ('W', 0))
    tr_lane_addr(e, 20, RB, 32, 2, 3)
    for q in range(1, 4):
        e(f'v_add_u32 v{20+q}, {q*STG}, v20')
    def mk_rd(p):
        return lambda st, s, t, h: (20 + (st + NS * p) % 4, (16 * s + 4 * h) * RB + 64 * t)
    accb = lambda p, t: 64 + 16 * NT * (p % 2) + 16 * t
    def epi(p, t):
        L = []
        for a in range(2):
            b = accb(p, t) + 8 * a
            f = 2 * NT * p + 2 * t + a
            d = 48 + 4 * (f % 4)
            L += [f'v_cvt_pk_bf16_f32 v{d+i}, v{b+2*i}, v{b+2*i+1}' for i in range(4)]
            if f % 4 == 0 and f:
                L.append('s_add_u32 s25, s25, 4096')
            L.append(f'buffer_store_dwordx4 v[{d}:{d+3}], v1, s[12:15], s25 offen offset:{1024*(f%4)}')
        return L
    bf = lambda ks: f'a[{4*ks}:{4*ks+3}]'
    for p in range(NP):
        acc = lambda t, p=p: f'v[{accb(p, t)}:{accb(p, t)+15}]'
        extra = [i for t in range(NT) for i in epi(p - 1, t)] if p else None
        last = p == NP - 1
        gemm(e, NS, NT, acc, bf, mk_rd(p), mk_batch(p), xl if p == 0 else None, 24, base=NS * p, vm=vm, SPS=SPS,
             tailw=None if last else mk_batch(p + 1), extra=extra, epi=(lambda t: epi(NP - 1, t)) if last else None,
             TS=int(os.environ.get('PTS', 2)), per=int(os.environ.get('PPER', 2)))
    e.stamp(1)
    if OPT('STAMP'): e('s_waitcnt vmcnt(0)')
    e.stamp(2)
    e.stamps_out(3, 8 if down else 5)
    tail(e, name)
    return e.text(), desc(name, 400, 256), (name, 256, 256, 4 * STG)

def silu_mul(t, base, dst, tmp):
    L = []
    for i in range(0, 8, 2):
        P = [(base + i + k, base + 8 + i + k, tmp + (i + k) % 4) for k in range(2)]
        L += [f'v_mul_f32 v{x}, 0xbfb8aa3b, v{g}' for g, u, x in P]
        L += [f'v_exp_f32 v{x}, v{x}' for g, u, x in P]
        L += [f'v_mul_f32 v{u}, v{g}, v{u}' for g, u, x in P]
        L += [f'v_add_f32 v{x}, 1.0, v{x}' for g, u, x in P]
        L += [f'v_rcp_f32 v{x}, v{x}' for g, u, x in P]
        L += [f'v_mul_f32 v{P[0][0]}, v{P[0][1]}, v{P[0][2]}', f'v_mul_f32 v{P[1][0]}, v{P[1][1]}, v{P[1][2]}']
        L.append(f'v_cvt_pk_bf16_f32 v{dst+i//2}, v{P[0][0]}, v{P[1][0]}')
    return L

def k_gateup():
    e = Emit(); name = 'k5_gateup_kernel'
    REG = 64 * 288 + 128
    STG = 2 * 64 * 288 + 256
    head(e, name, 256)
    srd(e, 4, A_WG, 576 * 9216)
    srd(e, 28, A_WU, 576 * 9216)
    srd(e, 8, A_WS, FR, H2)
    srd(e, 12, A_WS, 64 * 288 * 1024, ACT)
    wave_id(e, 16)
    e(f'''s_and_b32 s17, s2, 7
    s_bfe_u32 s18, s2, 0x10003
    s_lshl_b32 s17, s17, 1
    s_add_u32 s18, s18, s17
    s_lshr_b32 s19, s2, 4
    s_lshl_b32 s20, s19, 2
    s_add_u32 s20, s20, s16
    s_mul_i32 s21, s20, 36864
    s_mul_i32 s22, s18, 576
    s_and_b32 s26, s16, 1
    s_mul_i32 s24, s26, 9216
    s_lshr_b32 s27, s16, 1
    s_mul_i32 s27, s27, {REG}
    s_add_u32 s24, s24, s27
    s_mul_i32 s25, s20, {288*1024}
    s_mul_i32 s27, s18, {18*1024}
    s_add_u32 s25, s25, s27
    v_lshlrev_b32 v1, 4, v0''')
    srd_done(e)
    e('s_cmp_ge_u32 s16, 2')
    e('s_cselect_b32 s4, s28, s4')
    e('s_cselect_b32 s5, s29, s5')
    def xl(st):
        return [f'buffer_load_dwordx4 a[{16*st+4*j}:{16*st+4*j+3}], v1, s[8:11], s21 offen offset:{1024*j}' for j in range(4)] + ['s_add_u32 s21, s21, 4096']
    def mk_batch(cb):
        def batch(st):
            b = []
            for j in range(9):
                b.append([f's_add_u32 m0, s24, {((st+9*cb)%4)*STG + 1024*j}', 's_nop 0',
                          f'buffer_load_dwordx4 v{10+j}, s[4:7], s22 offen lds'])
            b[-1].append(f's_add_u32 s22, s22, {64*9216}')
            if st == 8:
                b[-1].append(f's_sub_u32 s22, s22, {576*9216 - 288}')
            return b
        return batch
    vm0 = early_x(e, xl)
    b0 = mk_batch(0)(0)
    for j in range(9):
        e(f's_mul_i32 s27, s26, 576')
        e(f's_add_u32 s27, s27, {64*j}')
        e(f'v_add_u32 v2, s27, v0')
        divmod_const(e, 3, 4, 2, 18, 5)
        e(f'v_mul_u32_u24 v{10+j}, 9216, v3')
        e(f'v_lshl_add_u32 v{10+j}, v4, 4, v{10+j}')
        put_early(e, vm0, b0[j], ('W', 0))
    tr_lane_addr(e, 20, 288, REG, 2, 3)
    e(f'v_add_u32 v21, {2*STG}, v20')
    def xl(st):
        return [f'buffer_load_dwordx4 a[{16*st+4*j}:{16*st+4*j+3}], v1, s[8:11], s21 offen offset:{1024*j}' for j in range(4)] + ['s_add_u32 s21, s21, 4096']
    def mk_rd(cb):
        def rd(st, s, t, h):
            q = (st + 9 * cb) % 4
            off = (q % 2) * STG + (16 * s + 4 * h) * 288 + 32 * t
            return (20 + q // 2, off)
        return rd
    bf = lambda ks: f'a[{4*ks}:{4*ks+3}]'
    def epi(blk, only=None):
        L = []
        for t in (range(9) if only is None else [only]):
            d = 48 + 4 * (t % 2)
            base = 64 + 16 * t
            if blk == 1:
                if t < 7:
                    base = 64 + 16 * (t % 2)
                    L += [f'v_accvgpr_read_b32 v{base+i}, a{144+16*t+i}' for i in range(16)]
                else:
                    base = 208 + 16 * (t - 7)
            L += silu_mul(t, base, d, 56)
            L.append(f'buffer_store_dwordx4 v[{d}:{d+3}], v1, s[12:15], s25 offen offset:{1024*(t%4)}')
            if t % 4 == 3 or t == 8:
                L.append(f's_add_u32 s25, s25, {4096 if t < 8 else 1024}')
        return L
    acc0 = lambda t: f'v[{64+16*t}:{64+16*t+15}]'
    acc1 = lambda t: f'a[{144+16*t}:{144+16*t+15}]' if t < 7 else f'v[{208+16*(t-7)}:{208+16*(t-7)+15}]'
    e.stamp(0)
    vm = gemm(e, 9, 9, acc0, bf, mk_rd(0), mk_batch(0), xl, 24, tailw=mk_batch(1), vm=vm0)
    e.stamp(1)
    e.stamp(2)
    if OPT('K5OLD'):
        gemm(e, 9, 9, acc1, bf, mk_rd(1), mk_batch(1), None, 24, base=9, vm=vm, extra=epi(0))
    else:
        gemm(e, 9, 9, acc1, bf, mk_rd(1), mk_batch(1), None, 24, base=9, vm=vm, extra=epi(0), epi=lambda t: epi(1, t), TS=int(os.environ.get('GTS', 2)), per=int(os.environ.get('GPER', 8)))
    e.stamp(3)
    if OPT('K5OLD'):
        for i in epi(1): e(i)
    if OPT('STAMP'): e('s_waitcnt vmcnt(0)')
    e.stamp(4)
    e.stamps_out(5, 11)
    tail(e, name)
    return e.text(), desc(name, 512, 256), (name, 256, 256, 4 * STG)
```

```python
from emit import Emit, OPT

MOD, H1, X1, H2, OF, PART, ACT = 0, 0x100000, 0x400000, 0x700000, 0x1000000, 0x2000000, 0xE00000
FR = 64 * 36 * 1024
A_X, A_K, A_V, A_WQ, A_WO, A_WG, A_WU, A_WD, A_C, A_WM, A_OUT, A_WS = 0, 8, 16, 24, 32, 48, 56, 64, 72, 80, 88, 104

def srd(e, r, arg, size, off=0):
    e(f's_load_dwordx2 s[{r}:{r+1}], s[0:1], {arg}')
    e(f's_mov_b32 s{r+2}, {size}')
    e(f's_mov_b32 s{r+3}, 0x00020000')
    if not hasattr(e, 'srds'): e.srds = []
    e.srds.append((r, off))

def srd_done(e):
    e('s_waitcnt lgkmcnt(0)')
    for r, off in e.srds:
        if off:
            e(f's_add_u32 s{r}, s{r}, {off}')
            e(f's_addc_u32 s{r+1}, s{r+1}, 0')
    e.srds = []

def head(e, name, nwg):
    e.raw(f'.globl {name}\n.p2align 8\n.type {name},@function\n{name}:')
    e(f's_cmp_ge_u32 s2, {nwg}')
    e(f's_cbranch_scc1 L_{name}_end')
    if OPT('TL'):
        e('s_memrealtime s[90:91]')
        e('s_waitcnt lgkmcnt(0)')

def tl_out(e, name):
    if OPT('TL'):
        k = int(name[1])
        e(f'''s_memrealtime s[92:93]
        s_load_dwordx2 s[80:81], s[0:1], 96
        s_waitcnt lgkmcnt(0)
        s_mov_b32 s82, 256
        s_mov_b32 s83, 0x20000
        s_cmp_lg_u32 s2, 17
        s_cbranch_scc1 L_notl{k}
        v_mov_b32 v2, s90
        v_mov_b32 v3, s92
        v_mov_b32 v4, {8*k}
        buffer_store_dwordx2 v[2:3], v4, s[80:83], 0 offen
        s_waitcnt vmcnt(0)''')
        e.label(f'L_notl{k}')

def tail(e, name):
    tl_out(e, name)
    e.label(f'L_{name}_end')
    e('s_endpgm')

def desc(name, vgpr, accum, sgpr=102):
    return f'''.p2align 6
.amdhsa_kernel {name}
  .amdhsa_next_free_vgpr {vgpr}
  .amdhsa_next_free_sgpr {sgpr}
  .amdhsa_accum_offset {accum}
  .amdhsa_group_segment_fixed_size 0
  .amdhsa_kernarg_size 112
  .amdhsa_user_sgpr_count 2
  .amdhsa_user_sgpr_kernarg_segment_ptr 1
  .amdhsa_system_sgpr_workgroup_id_x 1
.end_amdhsa_kernel
'''

def unpack(e, dst, src, n, smask):
    for i in range(n):
        e(f'v_lshlrev_b32 v{dst+2*i}, 16, v{src+i}')
        e(f'v_and_b32 v{dst+2*i+1}, {smask}, v{src+i}')

NMOD = 108
QSCALE = 0x3e0293ee

def mod_part(e):
    srd(e, 4, A_WM, 576 * 3456 * 2)
    srd(e, 8, A_C, 576 * 2)
    srd(e, 12, A_WS, 3456 * 4, MOD)
    if OPT('K0OLD'):
        e('s_mov_b32 s20, s2')
    else:
        e('''s_and_b32 s20, s2, 7
        s_lshl_b32 s20, s20, 1
        s_bfe_u32 s21, s2, 0x10003
        s_add_u32 s20, s20, s21
        s_and_b32 s21, s2, 0xfffffff0
        s_add_u32 s20, s20, s21
        s_cmp_ge_u32 s2, 96
        s_cselect_b32 s20, s2, s20''')
    e('''s_mov_b32 s16, 0xffff0000
    s_lshl_b32 s17, s20, 6
    v_and_b32 v1, 3, v0
    v_lshrrev_b32 v2, 2, v0
    v_mul_u32_u24 v4, 62208, v2
    v_lshl_add_u32 v4, v1, 4, v4
    v_mul_u32_u24 v5, 18, v2''')
    srd_done(e)
    for j in range(9):
        e(f'buffer_load_ushort v{10+j}, v5, s[8:11], 0 offen offset:{2*j}')
    for j in range(9):
        e(f'buffer_load_dwordx4 v[{20+4*j}:{23+4*j}], v4, s[4:7], s17 offen')
        if j < 8:
            e('v_add_u32 v4, 6912, v4')
    e('s_waitcnt vmcnt(9)')
    for j in range(9):
        e(f'v_lshlrev_b32 v{10+j}, 16, v{10+j}')
        e(f'v_mul_f32 v6, 0xbfb8aa3b, v{10+j}')
        e('v_exp_f32 v6, v6')
        e('v_add_f32 v6, 1.0, v6')
        e('v_rcp_f32 v6, v6')
        e(f'v_mul_f32 v6, v{10+j}, v6')
        e('v_cvt_pk_bf16_f32 v6, v6, v6')
        e(f'v_lshlrev_b32 v{10+j}, 16, v6')
    for i in range(8):
        e(f'v_mov_b32 v{60+i}, 0')
    for j in range(9):
        e(f's_waitcnt vmcnt({8-j})')
        unpack(e, 70, 20 + 4 * j, 4, 's16')
        for i in range(8):
            e(f'v_fmac_f32 v{60+i}, v{70+i}, v{10+j}')
    e('''v_lshlrev_b32 v6, 7, v2
    v_lshl_add_u32 v6, v1, 5, v6
    ds_write_b128 v6, v[60:63]
    ds_write_b128 v6, v[64:67] offset:16
    s_waitcnt lgkmcnt(0)
    s_barrier
    v_and_b32 v1, 31, v0
    v_lshrrev_b32 v2, 5, v0
    v_lshlrev_b32 v6, 10, v2
    v_lshl_add_u32 v6, v1, 2, v6''')
    for i in range(8):
        e(f'ds_read_b32 v{20+i}, v6 offset:{128*i}')
    for i in range(1, 8):
        e(f'v_add_f32 v20, v20, v{20+i}')
    e('''v_lshlrev_b32 v6, 2, v0
    ds_write_b32 v6, v20 offset:8192
    s_waitcnt lgkmcnt(0)
    s_barrier
    v_readfirstlane_b32 s18, v0
    s_nop 3
    s_cmp_ge_u32 s18, 64
    s_cbranch_scc1 L_mod_done
    v_lshlrev_b32 v6, 2, v1''')
    for i in range(8):
        e(f'ds_read_b32 v{20+i}, v6 offset:{8192+128*i}')
    for i in range(1, 8):
        e(f'v_add_f32 v20, v20, v{20+i}')
    e('''v_cvt_pk_bf16_f32 v20, v20, v20
    v_lshlrev_b32 v20, 16, v20
    s_lshl_b32 s17, s20, 7
    v_cmp_gt_u32 vcc, 32, v0
    s_and_saveexec_b64 s[18:19], vcc
    buffer_store_dword v20, v6, s[12:15], s17 offen''')
    e.label('L_mod_done')

def k_mod():
    e = Emit(); name = 'k0_mod_kernel'
    head(e, name, NMOD)
    mod_part(e)
    tail(e, name)
    return e.text(), desc(name, 80, 80), (name, NMOD, 256, 9216)

def row_reduce(e, v, ldsoff, t1, t2, vwaddr, vraddr):
    e(f'v_add_f32_dpp v{v}, v{v}, v{v} row_ror:8 row_mask:0xf bank_mask:0xf')
    for sw in ('v_permlane16_swap_b32', 'v_permlane32_swap_b32'):
        e(f'v_mov_b32 v{t1}, v{v}')
        e(f'v_mov_b32 v{t2}, v{v}')
        e(f'{sw} v{t1}, v{t2}')
        e(f'v_add_f32 v{v}, v{t1}, v{t2}')
    e(f'ds_write_b32 v{vwaddr}, v{v} offset:{ldsoff}')
    e('s_waitcnt lgkmcnt(0)')
    e('s_barrier')
    for w in range(9):
        e(f'ds_read_b32 v{70+w}, v{vraddr} offset:{ldsoff+w*256}')
    e(f'v_add_f32 v{v}, v70, v71')
    for w in range(2, 9):
        e(f'v_add_f32 v{v}, v{v}, v{70+w}')

def k_row(mode):
    e = Emit(); name = {1: 'k1_ln_kernel', 2: 'k4_red_kernel', 3: 'k7_red_kernel'}[mode]
    head(e, name, 256)
    if mode == 3:
        srd(e, 4, A_WS, FR, X1)
    else:
        srd(e, 4, A_X, FR)
    srd(e, 8, A_WS, 3456 * 4, MOD)
    srd(e, 12, A_WS, 8 * FR, PART)
    if mode == 3:
        srd(e, 16, A_OUT, FR)
    else:
        srd(e, 16, A_WS, FR, H1 if mode == 1 else H2)
    srd(e, 20, A_WS, FR, X1)
    if mode == 1 and not OPT('NOPF'):
        srd(e, 32, A_WQ, 576 * 8192)
    e('''s_mov_b32 s24, 0xffff0000
    v_and_b32 v1, 7, v0
    v_bfe_u32 v2, v0, 3, 1
    v_lshrrev_b32 v3, 4, v0
    s_lshl_b32 s25, s2, 3
    v_add_u32 v4, s25, v1
    v_mul_u32_u24 v4, 1152, v4
    v_lshl_add_u32 v4, v3, 5, v4
    v_lshl_add_u32 v4, v2, 4, v4
    s_lshr_b32 s26, s2, 2
    s_mul_i32 s26, s26, 36864
    s_and_b32 s27, s2, 3
    s_lshl_b32 s27, s27, 7
    s_add_u32 s26, s26, s27
    v_lshlrev_b32 v5, 10, v3
    v_lshl_add_u32 v5, v2, 9, v5
    v_lshl_add_u32 v5, v1, 4, v5
    v_add_u32 v5, s26, v5
    v_lshlrev_b32 v6, 6, v3
    v_lshl_add_u32 v6, v2, 5, v6
    v_lshlrev_b32 v7, 2, v0
    v_lshlrev_b32 v8, 2, v1''')
    srd_done(e)
    e('buffer_load_dwordx4 v[10:13], v4, s[4:7], 0 offen')
    def modload(idx, dst, fl=''):
        e(f's_mov_b32 s28, {idx*2304}')
        e(f'buffer_load_dwordx4 v[{dst}:{dst+3}], v6, s[8:11], s28 offen{fl}')
        e(f'buffer_load_dwordx4 v[{dst+4}:{dst+7}], v6, s[8:11], s28 offen offset:16{fl}')
    if mode >= 2:
        for p in range(8):
            e(f's_mov_b32 s28, {p*FR}')
            e(f'buffer_load_dwordx4 v[{80+4*p}:{83+4*p}], v5, s[12:15], s28 offen')
        modload(2 if mode == 2 else 5, 40)
    if mode <= 2:
        modload(0 if mode == 1 else 3, 48)
        modload(1 if mode == 1 else 4, 56)
    if mode == 1 and not OPT('NOPF'):
        e('s_mul_i32 s29, s2, 18432')
        e('v_lshlrev_b32 v9, 4, v0')
        e('buffer_load_dwordx4 v[100:103], v9, s[32:35], s29 offen')
        e('s_add_u32 s29, s29, 9216')
        e('buffer_load_dwordx4 v[104:107], v9, s[32:35], s29 offen')
    nmod = {1: 4, 2: 6, 3: 2}[mode]
    prog = mode >= 2 and not OPT('NOPROG')
    if prog:
        e(f's_waitcnt vmcnt({8 + nmod})')
    else:
        e('s_waitcnt vmcnt(%d)' % (2 if mode == 1 and not OPT('NOPF') else 0))
    unpack(e, 20, 10, 4, 's24')
    if mode >= 2:
        if prog: e(f's_waitcnt vmcnt({7 + nmod})')
        unpack(e, 30, 80, 4, 's24')
        for p in range(1, 8):
            if prog: e(f's_waitcnt vmcnt({7 - p + nmod})')
            unpack(e, 64, 80 + 4 * p, 4, 's24')
            for i in range(8):
                e(f'v_add_f32 v{30+i}, v{30+i}, v{64+i}')
        if prog: e('s_waitcnt vmcnt(0)')
        for i in range(4):
            e(f'v_cvt_pk_bf16_f32 v{64+i}, v{30+2*i}, v{31+2*i}')
        unpack(e, 30, 64, 4, 's24')
        for i in range(8):
            e(f'v_mul_f32 v{30+i}, v{30+i}, v{40+i}')
        for i in range(4):
            e(f'v_cvt_pk_bf16_f32 v{64+i}, v{30+2*i}, v{31+2*i}')
        unpack(e, 30, 64, 4, 's24')
        for i in range(8):
            e(f'v_add_f32 v{20+i}, v{20+i}, v{30+i}')
        for i in range(4):
            e(f'v_cvt_pk_bf16_f32 v{64+i}, v{20+2*i}, v{21+2*i}')
        if mode == 3:
            e('buffer_store_dwordx4 v[64:67], v4, s[16:19], 0 offen')
        else:
            e('buffer_store_dwordx4 v[64:67], v4, s[20:23], 0 offen')
            unpack(e, 20, 64, 4, 's24')
    if mode <= 2:
        e('v_add_f32 v9, v20, v21')
        for i in range(2, 8):
            e(f'v_add_f32 v9, v9, v{20+i}')
        row_reduce(e, 9, 0, 14, 15, 7, 8)
        e('v_mul_f32 v9, 0x3ae38e39, v9')
        for i in range(8):
            e(f'v_sub_f32 v{20+i}, v{20+i}, v9')
        e('v_mul_f32 v9, v20, v20')
        for i in range(1, 8):
            e(f'v_fmac_f32 v9, v{20+i}, v{20+i}')
        row_reduce(e, 9, 4096, 14, 15, 7, 8)
        e('v_mul_f32 v9, 0x3ae38e39, v9')
        e('v_add_f32 v9, 0x3727c5ac, v9')
        e('v_rsq_f32 v9, v9')
        for i in range(8):
            e(f'v_mul_f32 v{20+i}, v{20+i}, v9')
            e(f'v_add_f32 v{56+i}, 1.0, v{56+i}')
        for i in range(8):
            e(f'v_fma_f32 v{20+i}, v{20+i}, v{56+i}, v{48+i}')
        if mode == 1:
            for i in range(8):
                e(f'v_mul_f32 v{20+i}, {QSCALE}, v{20+i}')
        for i in range(4):
            e(f'v_cvt_pk_bf16_f32 v{68+i}, v{20+2*i}, v{21+2*i}')
        e('buffer_store_dwordx4 v[68:71], v5, s[16:19], 0 offen')
    tail(e, name)
    return e.text(), desc(name, 112, 112), (name, 256, 576, 8192)
```
